```python
import torch

def _softmax(x, axis=-1):
    return torch.softmax(x, dim=axis)
def _gelu(x):
    return torch.nn.functional.gelu(x, approximate="tanh")
def _silu(x):
    return torch.nn.functional.silu(x)
def _sigmoid(x):
    return torch.sigmoid(x)
def _layernorm(x, axis=-1, eps=1e-5):
    m = x.mean(dim=axis, keepdim=True)
    v = x.var(dim=axis, keepdim=True, unbiased=False)
    return (x - m) / torch.sqrt(v + eps)
def _scatter_add(tgt, idx, src, axis=0):
    return tgt.clone().index_add_(axis, idx, src)
def _segment_sum(src, seg, n):
    out = torch.zeros((n,) + src.shape[1:], dtype=src.dtype)
    return out.index_add_(0, seg, src)
def _pad(x, pw):
    flat = tuple(v for pair in reversed(pw) for v in pair)
    return torch.nn.functional.pad(x, flat)

kernel_name = 'parallel_sum__spectral_gfnet__glu_gated_reglu__prompt'

def setup_inputs():

    _w = (lambda a: (lambda t: t.to(torch.bfloat16) if t.is_floating_point() else t)(torch.as_tensor(a)))
    def _A_setup():
        B, S, D = 1, 2048, 512
        Df = D // 2 + 1
        return {
            "x": _w((lambda *s: torch.randn(*s, dtype=torch.bfloat16) * 0.05)(B, S, D)),
            "w_r": _w((lambda *s: torch.randn(*s, dtype=torch.bfloat16) * 0.4)(S, Df) * 0.02),
            "w_i": _w((lambda *s: torch.randn(*s, dtype=torch.bfloat16) * 0.4)(S, Df) * 0.02),
        }
    _A_in = _A_setup()

    def _B_setup():
        B, S, D, F = 1, 2048, 512, 1376
        return {
            "x": _w((lambda *s: torch.randn(*s, dtype=torch.bfloat16) * 0.05)(B, S, D)),
            "W_gate": _w((lambda *s: torch.randn(*s, dtype=torch.bfloat16) * 0.2)(D, F) * (2.0 / D) ** 0.5),
            "W_up": _w((lambda *s: torch.randn(*s, dtype=torch.bfloat16) * 0.2)(D, F) * (2.0 / D) ** 0.5),
            "W_down": _w((lambda *s: torch.randn(*s, dtype=torch.bfloat16) * 0.2)(F, D) * (1.0 / F) ** 0.5),
        }
    _B_in = _B_setup()

    return {
        "A_x": _A_in["x"],
        "A_w_r": _A_in["w_r"],
        "A_w_i": _A_in["w_i"],
        "B_x": _B_in["x"],
        "B_W_gate": _B_in["W_gate"],
        "B_W_up": _B_in["W_up"],
        "B_W_down": _B_in["W_down"],
    }

def reference(A_x, A_w_r, A_w_i, B_x, B_W_gate, B_W_up, B_W_down):
    def _A_ref(x, w_r, w_i):
        B, S, D = x.shape
        X = (lambda x, axes=(-2,-1): torch.fft.rfft2(x.float(), dim=axes))(x, axes=(-2, -1))
        W = w_r + 1j * w_i
        X = X * W
        y = (lambda x, s, axes=(-2,-1): torch.fft.irfft2(x, s=s, dim=axes).to(torch.bfloat16))(X, (S, D), axes=(-2, -1))
        return y

    def _B_ref(x, W_gate, W_up, W_down):
        gate = torch.einsum("bsd,df->bsf", x, W_gate)
        up = torch.einsum("bsd,df->bsf", x, W_up)
        gate = gate * (lambda x, dt: x.to(dt))(gate > 0, gate.dtype)
        h = gate * up
        return torch.einsum("bsf,fd->bsd", h, W_down)

    x = A_x
    xn = _layernorm(x, axis=-1)
    return x + _A_ref(xn, A_w_r, A_w_i) + _B_ref(xn, B_W_gate, B_W_up, B_W_down)
```

```python
import re

TRANS = ('v_exp_f32', 'v_log_f32', 'v_rcp_f32', 'v_rsq_f32', 'v_sqrt_f32', 'v_sin_f32', 'v_cos_f32')

def vr(a, n=1):
    return f'v{a}' if n == 1 else f'v[{a}:{a+n-1}]'
def sr(a, n=1):
    return f's{a}' if n == 1 else f's[{a}:{a+n-1}]'

_reg_re = re.compile(r'^(-|abs\()?([vas])(\d+)\)?$')
_rng_re = re.compile(r'^(-)?([vas])\[(\d+):(\d+)\]$')

def regs_of(op):
    op = op.strip()
    m = _reg_re.match(op)
    if m: return [(m.group(2), int(m.group(3)))]
    m = _rng_re.match(op)
    if m: return [(m.group(2), i) for i in range(int(m.group(3)), int(m.group(4)) + 1)]
    if op == 'vcc': return [('s', 'vcc')]
    if op == 'exec': return [('s', 'exec')]
    if op == 'm0': return [('s', 'm0')]
    return []

class Ins:
    __slots__ = ('text', 'op', 'ops', 'kind', 'wr', 'rd', 'passes', 'label', 'target', 'nop', 'srcC', 'srcAB', 'dpp', 'lds_dma')
    def __init__(self, text):
        self.text = text
        self.label = None; self.target = None; self.nop = 0; self.passes = 0
        self.wr = []; self.rd = []; self.srcC = []; self.srcAB = []; self.dpp = False; self.lds_dma = False
        t = text.split(';')[0].strip()
        if not t or t.startswith('.'):
            self.kind = 'none'; self.op = ''; self.ops = []; return
        if t.endswith(':'):
            self.kind = 'label'; self.label = t[:-1]; self.op = ''; self.ops = []; return
        parts = t.split(None, 1)
        self.op = op = parts[0]
        rest = parts[1] if len(parts) > 1 else ''
        ops = [o.strip() for o in re.split(r',(?![^\[]*\])', rest)] if rest else []
        if ops:
            last = ops[-1].split()
            ops[-1] = last[0] if last else ''
            mods = last[1:]
        else:
            mods = []
        self.ops = ops
        R = regs_of
        if op == 's_nop':
            self.kind = 'nop'; self.nop = int(ops[0], 0) + 1; return
        if op.startswith('v_mfma'):
            self.kind = 'mfma'
            self.passes = 8 if '32x32' in op else (4 if '16x16' in op else 2)
            self.wr = R(ops[0]); self.srcAB = R(ops[1]) + R(ops[2]); self.srcC = R(ops[3]); self.rd = self.srcAB + self.srcC
            return
        if op.startswith('v_'):
            self.kind = 'valu'
            self.dpp = ('dpp' in op) or any(m.startswith(('row_', 'quad_perm', 'wave_')) for m in mods)
            if op.startswith('v_permlane') and 'swap' in op:
                self.wr = R(ops[0]) + R(ops[1]); self.rd = list(self.wr); return
            if op.startswith('v_swap'):
                self.wr = R(ops[0]) + R(ops[1]); self.rd = list(self.wr); return
            self.wr = R(ops[0])
            start = 1
            if op.startswith(('v_add_co', 'v_addc_co', 'v_sub_co', 'v_subb_co', 'v_subrev_co', 'v_mad_u64', 'v_div_scale')):
                self.wr += R(ops[1]); start = 2
            for o in ops[start:]: self.rd += R(o)
            if op.startswith(('v_fmac', 'v_dot2c', 'v_mac')): self.rd += R(ops[0])
            if op.startswith('v_cmpx'): self.wr += [('s', 'exec')]
            if op.startswith('v_cndmask') and len(ops) == 3: self.rd += [('s', 'vcc')]
            return
        if op.startswith('ds_'):
            self.kind = 'ds'
            if op.startswith(('ds_read', 'ds_bpermute', 'ds_permute', 'ds_swizzle')) or '_rtn' in op:
                self.wr = R(ops[0])
                for o in ops[1:]: self.rd += R(o)
            else:
                for o in ops: self.rd += R(o)
            return
        if op.startswith(('buffer_', 'global_', 'flat_')):
            self.kind = 'vmem'
            allm = ' '.join(mods)
            self.lds_dma = (' lds' in (' ' + allm)) or ('_lds_' in op)
            if op in ('buffer_wbl2', 'buffer_inv'): return
            if 'load' in op and not self.lds_dma:
                self.wr = R(ops[0])
                for o in ops[1:]: self.rd += R(o)
                if 'd16' in op: self.rd += R(ops[0])
            elif 'atomic' in op and 'sc0' in mods:
                self.wr = R(ops[0]) if op.startswith('global') else R(ops[0])
                for o in ops: self.rd += R(o)
            else:
                for o in ops: self.rd += R(o)
            if self.lds_dma: self.rd += [('s', 'm0')]
            return
        if op.startswith('s_'):
            self.kind = 'salu'
            if op.startswith(('s_cbranch', 's_branch')):
                self.kind = 'branch'; self.target = ops[0]; return
            if op in ('s_endpgm', 's_barrier', 's_waitcnt', 's_sleep', 's_setprio', 's_setpc_b64') or op.startswith(('s_cmp', 's_bitcmp')):
                for o in ops: self.rd += R(o)
                return
            if ops: self.wr = R(ops[0])
            for o in ops[1:]: self.rd += R(o)
            if 'saveexec' in op: self.wr += [('s', 'exec')]
            return
        raise ValueError('cannot parse: ' + text)

def _need(p, c):
    n = 0
    pw = set(p.wr)
    isv = lambda r: r[0] in 'va'
    if p.kind == 'valu':
        pwv = {r for r in pw if isv(r)}
        pws = {r for r in pw if r[0] == 's'}
        if c.kind == 'mfma' and pwv & set(c.rd): n = max(n, 2)
        if c.kind == 'valu':
            if p.op in TRANS and c.op not in TRANS and pwv & set(c.rd): n = max(n, 1)
            if p.op in TRANS and c.op in TRANS and pwv & set(c.rd): n = max(n, 1)
            if c.op.startswith(('v_readfirstlane', 'v_readlane')) and pwv & set(c.rd): n = max(n, 1)
            if c.op.startswith('v_permlane') and pwv & set(c.rd): n = max(n, 2)
            if c.dpp and pwv & set(c.rd): n = max(n, 2)
            if pws & set(c.rd):
                n = max(n, 4 if c.op.startswith(('v_readlane', 'v_writelane')) else 2)
            if ('sdwa' in p.op) and pwv & set(c.rd): n = max(n, 1)
        if c.kind == 'vmem' and pws & set(c.rd): n = max(n, 5)
        if c.kind in ('salu', 'branch') and pws & set(c.rd): n = max(n, 4)
        if ('s', 'exec') in pws and c.kind == 'mfma': n = max(n, 4)
        if ('s', 'exec') in pws and c.kind == 'valu' and c.dpp: n = max(n, 5)
    if p.kind == 'mfma':
        D = set(p.wr)
        big = {2: 5, 4: 8, 8: 12}[p.passes]
        if c.kind == 'mfma':
            if D & set(c.srcAB): n = max(n, big)
            if D & set(c.srcC):
                if not (set(c.srcC) == D and c.passes == p.passes):
                    n = max(n, {2: 4, 4: 6, 8: 10}[p.passes])
                elif p.passes == 2: n = max(n, 2)
            if D & set(c.wr) and not (D & set(c.srcC)): n = max(n, big)
        elif c.kind in ('valu', 'ds', 'vmem'):
            if D & (set(c.rd) | set(c.wr)): n = max(n, big)
        if c.kind == 'valu' and set(p.srcC) & set(c.wr): n = max(n, {2: 1, 4: 3, 8: 7}[p.passes])
    if p.kind == 'vmem' and ('store' in p.op or 'atomic' in p.op) and ('x4' in p.op or 'x3' in p.op):
        data = set(regs_of(p.ops[0])) if p.op.startswith('buffer') else set(regs_of(p.ops[1]))
        if c.kind == 'valu' and data & set(c.wr): n = max(n, 2)
        elif c.kind in ('ds', 'vmem', 'mfma') and data & set(c.wr): n = max(n, 1)
    if p.kind == 'salu' and ('s', 'm0') in pw and c.lds_dma: n = max(n, 1)
    return n

MAXW = 13

def fix_hazards(lines, verbose=False):
    for _ in range(50):
        ins = [Ins(l) for l in lines]
        labels = {i.label: k for k, i in enumerate(ins) if i.label}
        real = lambda i: i.kind not in ('none', 'label')
        fixes = {}
        for k, p in enumerate(ins):
            if p.kind not in ('valu', 'mfma', 'vmem', 'salu'): continue
            if p.kind == 'salu' and ('s', 'm0') not in p.wr: continue
            if p.kind == 'vmem' and not ('store' in p.op or 'atomic' in p.op): continue
            stack = [(k + 1, 0)]
            seen = set()
            while stack:
                j, dist = stack.pop()
                while j < len(ins) and dist < MAXW:
                    if (j, dist) in seen: break
                    seen.add((j, dist))
                    c = ins[j]
                    if not real(c): j += 1; continue
                    need = _need(p, c)
                    if need > dist:
                        fixes[j] = max(fixes.get(j, 0), need - dist)
                        break_path = True
                    if c.op == 's_endpgm': break
                    step = c.nop if c.kind == 'nop' else 1
                    if c.kind == 'branch':
                        if c.target in labels: stack.append((labels[c.target], dist + 1))
                        if c.op == 's_branch': break
                    if c.op == 's_setpc_b64': break
                    dist += step; j += 1
        if not fixes: return lines
        out = []
        first = min(fixes)
        applied = 0; last = -100
        for k, l in enumerate(lines):
            if k in fixes and k - last > MAXW:
                n = fixes[k]
                if verbose: print(f'hazard: {n} states before: {l.strip()}')
                while n > 0:
                    m = min(n, 16); out.append(f's_nop {m-1}'); n -= m
                applied += 1; last = k
            out.append(l)
        lines = out
    raise RuntimeError('hazard fixing did not converge')

class Em:
    def __init__(self):
        self.L = []
        self.vm = []
        self.lg = []
    def __call__(self, s, vm=None, lg=None):
        for line in s.split('\n'):
            line = line.strip()
            if line: self.L.append(line)
        if vm is not None: self.vm.append(vm)
        if lg is not None: self.lg.append(lg)
    def wait_vm(self, tag):
        idx = max([i for i, t in enumerate(self.vm) if t == tag], default=-1)
        if idx < 0: return
        n = len(self.vm) - 1 - idx
        self.L.append(f's_waitcnt vmcnt({min(n, 63)})')
        self.vm = self.vm[idx + 1:]
    def wait_lg(self, tag):
        idx = max([i for i, t in enumerate(self.lg) if t == tag], default=-1)
        if idx < 0: return
        n = len(self.lg) - 1 - idx
        assert n <= 15, n
        self.L.append(f's_waitcnt lgkmcnt({n})')
        self.lg = self.lg[idx + 1:]
    def drain(self, vm=True, lg=True):
        s = []
        if vm: s.append('vmcnt(0)'); self.vm = []
        if lg: s.append('lgkmcnt(0)'); self.lg = []
        self.L.append('s_waitcnt ' + ' '.join(s))
    def label(self, n): self.L.append(n + ':')

def interleave(main, fill):
    out = []
    n = len(main); m = len(fill); k = 0
    for i, x in enumerate(main):
        out.append(x)
        upto = (m * (i + 1)) // n
        while k < upto:
            out.append(fill[k]); k += 1
    return out
```

```python
from asmlib import *

H_OFF, X1_OFF, Y1_OFF, WT_OFF, ID_OFF, TS_OFF = 0, 0x600000, 0x800000, 0xA00000, 0xD00000, 0xE00000
H_SZ, X1_SZ, Y1_SZ, WT_SZ, ID_SZ = 64*86*1024, 0x200000, 0x200000, 257*8192, 0x80000

def srd(e, s, lo, hi, size, add=0):
    if add:
        e(f's_add_u32 s{s}, s{lo}, {add}'); e(f's_addc_u32 s{s+1}, s{hi}, 0')
        e(f's_and_b32 s{s+1}, s{s+1}, 0xffff')
    else:
        e(f's_mov_b32 s{s}, s{lo}'); e(f's_and_b32 s{s+1}, s{hi}, 0xffff')
    e(f's_mov_b32 s{s+2}, {size}'); e(f's_mov_b32 s{s+3}, 0x20000')

def stamp(e, prof, slot, kid, sws, tmp_s=90, tmp_v=250):
    if not prof: return
    e(f's_memrealtime s[{tmp_s}:{tmp_s+1}]')
    e('s_waitcnt lgkmcnt(0)')
    e(f's_lshl_b32 s{tmp_s+2}, s2, 5'); e(f's_add_u32 s{tmp_s+2}, s{tmp_s+2}, {kid*16384 + slot*4}')
    e(f'v_mov_b32 v{tmp_v}, s{tmp_s}'); e(f'v_mov_b32 v{tmp_v+1}, s{tmp_s+2}')
    e(f'buffer_store_dword v{tmp_v}, v{tmp_v+1}, s[{sws}:{sws+3}], 0 offen', vm='ts')

def k1(prof=False):
    e = Em()
    DFT_OFF = 0; SLOT0 = 32768; SLOT_SZ = 16384 + 12320 + 12288; SCR = SLOT0 + 3*SLOT_SZ
    sX, sWG, sWU, sH, sWR, sWI, sX1, sWT, sID = 8, 12, 16, 20, 24, 28, 32, 36, 40
    sTS = 44
    s_w, s_t, s_g, s_P, s_b, s_rh, s_ch = 48, 49, 50, 51, 52, 53, 54
    s_mask = 55
    s_sx, s_sw = 56, 57
    s_slotD = 58
    s_slotC = 59
    s_d = 60
    s_i = 61
    s_m0x, s_m0w = 62, 63
    s_t0, s_t1, s_t2, s_t3 = 64, 65, 66, 67
    s_dj = 68
    vL = 1
    vxo = [2, 3, 4, 5]; vwo = [6, 7, 8]
    vA, vH = 9, 10
    xa = [16, 17, 18, 19]; xb = [20, 21, 22, 23]; wa = [24, 25]; da = [26, 27]
    sum0, sum1, sq0, sq1 = 28, 29, 30, 31
    tmp = list(range(32, 40))
    cs = [40, 41, 42]
    wtraw = list(range(44, 60)); wtx = [60, 61]
    X = [[64, 68], [72, 76]]; W = [[80, 84, 88], [92, 96, 100]]; DF = [104, 108]
    idf = 112
    vwta = 116; vwtx = 117
    accM = [[128 + 16*(2*j + i) for i in range(2)] for j in range(3)]; accD = 224
    e('s_cmp_ge_u32 s2, 256'); e('s_cbranch_scc1 L1_done')
    e('s_load_dwordx4 s[72:75], s[0:1], 0')
    e('s_load_dwordx2 s[76:77], s[0:1], 16')
    e('s_load_dwordx4 s[80:83], s[0:1], 32')
    e('s_load_dwordx2 s[78:79], s[0:1], 72')
    e(f'v_and_b32 v{vL}, 63, v0'); e(f'v_lshrrev_b32 v{tmp[0]}, 6, v0')
    e(f'v_and_b32 v{vA}, 31, v0'); e(f'v_bfe_u32 v{vH}, v0, 5, 1')
    e(f'v_readfirstlane_b32 s{s_w}, v{tmp[0]}')
    e(f's_and_b32 s{s_t0}, s2, 7'); e(f's_lshr_b32 s{s_t1}, s2, 3')
    e(f's_and_b32 s{s_t}, s{s_t0}, 1'); e(f's_lshl_b32 s{s_t}, s{s_t}, 3'); e(f's_and_b32 s{s_t2}, s{s_t1}, 7'); e(f's_add_u32 s{s_t}, s{s_t}, s{s_t2}')
    e(f's_lshr_b32 s{s_g}, s{s_t0}, 1'); e(f's_lshl_b32 s{s_g}, s{s_g}, 2'); e(f's_lshr_b32 s{s_t2}, s{s_t1}, 3'); e(f's_add_u32 s{s_g}, s{s_g}, s{s_t2}')
    e(f's_mul_i32 s{s_P}, s{s_g}, {8*21846}'); e(f's_lshr_b32 s{s_P}, s{s_P}, 16')
    e(f's_lshl_b32 s{s_b}, s{s_t}, 2'); e(f's_add_u32 s{s_b}, s{s_b}, s{s_w}')
    e(f's_lshr_b32 s{s_rh}, s{s_w}, 1'); e(f's_and_b32 s{s_ch}, s{s_w}, 1')
    e(f's_mov_b32 s{s_mask}, 0xffff0000')
    l = vL; t0, t1, t2, t3 = tmp[0:4]
    e(f'v_lshrrev_b32 v{t0}, 3, v{l}')
    e(f'v_and_b32 v{t1}, 7, v{l}')
    e(f'v_lshrrev_b32 v{t2}, 4, v{l}')
    e(f'v_xor_b32 v{t1}, v{t1}, v{t2}')
    e(f'v_lshlrev_b32 v{t0}, 16, v{t0}')
    e(f'v_lshl_add_u32 v{vxo[0]}, v{t1}, 4, v{t0}')
    e(f'v_xor_b32 v{vxo[1]}, 64, v{vxo[0]}'); e(f'v_add_u32 v{vxo[1]}, 0x80000, v{vxo[1]}')
    e(f'v_add_u32 v{vxo[2]}, 0x100000, v{vxo[0]}'); e(f'v_add_u32 v{vxo[3]}, 0x100000, v{vxo[1]}')
    e(f's_mov_b32 s{s_t0}, {(2**32 + 11)//12}'); e(f's_movk_i32 s{s_t1}, 2752')
    for i in range(3):
        e(f'v_add_u32 v{t0}, {64*i}, v{l}')
        e(f'v_mul_hi_u32 v{t1}, v{t0}, s{s_t0}')
        e(f'v_mul_u32_u24 v{t2}, 12, v{t1}'); e(f'v_sub_u32 v{t2}, v{t0}, v{t2}')
        e(f'v_mul_u32_u24 v{t1}, s{s_t1}, v{t1}')
        e(f'v_lshl_add_u32 v{vwo[i]}, v{t2}, 4, v{t1}')
    e('s_waitcnt lgkmcnt(0)')
    srd(e, sX, 72, 73, 2048*1024); srd(e, sWR, 74, 75, 2048*514); srd(e, sWI, 76, 77, 2048*514)
    srd(e, sWG, 80, 81, 512*2752); srd(e, sWU, 82, 83, 512*2752)
    srd(e, sH, 78, 79, H_SZ, H_OFF); srd(e, sX1, 78, 79, X1_SZ, X1_OFF); srd(e, sWT, 78, 79, WT_SZ, WT_OFF); srd(e, sID, 78, 79, ID_SZ, ID_OFF)
    if prof: srd(e, sTS, 78, 79, 0x10000, TS_OFF)
    stamp(e, prof, 0, 0, sTS)
    s_vg, s_t2x, s_dq = 84, 85, 86
    e(f's_and_b32 s{s_vg}, s2, 7'); e(f's_bfe_u32 s{s_t2x}, s2, 0x10003'); e(f's_lshr_b32 s{s_dq}, s2, 4')
    e(f's_lshl_b32 s{s_t0}, s{s_w}, 3'); e(f's_lshl_b32 s{s_t1}, s{s_t2x}, 2'); e(f's_add_u32 s{s_t0}, s{s_t0}, s{s_t1}')
    e(f's_lshl_b32 s{s_t1}, s{s_dq}, 7'); e(f's_add_u32 s{s_t0}, s{s_t0}, s{s_t1}')
    e(f's_mul_i32 s{s_t0}, s{s_t0}, 514'); e(f's_lshl_b32 s{s_t1}, s{s_vg}, 6'); e(f's_add_u32 s{s_t0}, s{s_t0}, s{s_t1}')
    e(f'v_mul_u32_u24 v{t0}, 1028, v{vH}'); e(f'v_lshl_add_u32 v{t0}, v{vA}, 1, v{t0}'); e(f'v_add_u32 v{t0}, s{s_t0}, v{t0}')
    for dj in range(4): e(f's_mov_b32 s{s_dj+dj}, {dj*16448}')
    for nn in range(2):
        for dj in range(4):
            e(f'buffer_load_ushort v{wtraw[nn*4+dj]}, v{t0}, s[{sWR}:{sWR+3}], s{s_dj+dj} offen offset:{nn*514}', vm='wt')
            e(f'buffer_load_ushort v{wtraw[8+nn*4+dj]}, v{t0}, s[{sWI}:{sWI+3}], s{s_dj+dj} offen offset:{nn*514}', vm='wt')
    e(f's_lshl_b32 s{s_t0}, s{s_vg}, 18'); e(f's_lshl_b32 s{s_t1}, s{s_dq}, 9'); e(f's_add_u32 s{s_t0}, s{s_t0}, s{s_t1}')
    e(f's_lshl_b32 s{s_t1}, s{s_t2x}, 8'); e(f's_add_u32 s{s_t0}, s{s_t0}, s{s_t1}')
    e(f's_add_u32 s87, s{s_t0}, 0')
    e(f's_lshl_b32 s{s_t1}, s{s_w}, 6'); e(f's_add_u32 s{s_t0}, s{s_t0}, s{s_t1}')
    e(f'v_lshlrev_b32 v{t1}, 13, v{vA}'); e(f'v_lshl_add_u32 v{t1}, v{vH}, 5, v{t1}'); e(f'v_add_u32 v{vwta}, s{s_t0}, v{t1}')
    e(f'v_lshlrev_b32 v{vwtx}, 2, v{l}')
    e(f's_cmp_eq_u32 s{s_vg}, 7'); e(f's_cselect_b32 s{s_t0}, 1, 0'); e(f's_cmp_eq_u32 s{s_w}, 0'); e(f's_cselect_b32 s88, s{s_t0}, 0')
    e(f's_cmp_eq_u32 s88, 1'); e('s_cbranch_scc0 L1_nox')
    e(f'v_lshrrev_b32 v{t0}, 4, v{l}'); e(f'v_lshlrev_b32 v{t0}, 3, v{t0}')
    e(f'v_bfe_u32 v{t1}, v{l}, 2, 2'); e(f'v_add_u32 v{t0}, v{t0}, v{t1}')
    e(f'v_and_b32 v{t1}, 3, v{l}'); e(f'v_lshl_add_u32 v{t0}, v{t1}, 5, v{t0}')
    e(f's_lshl_b32 s{s_t0}, s{s_t2x}, 2'); e(f's_lshl_b32 s{s_t1}, s{s_dq}, 7'); e(f's_add_u32 s{s_t0}, s{s_t0}, s{s_t1}')
    e(f'v_add_u32 v{t0}, s{s_t0}, v{t0}'); e(f'v_mul_u32_u24 v{t0}, 514, v{t0}'); e(f'v_add_u32 v{t0}, 512, v{t0}')
    e(f'buffer_load_ushort v{wtx[0]}, v{t0}, s[{sWR}:{sWR+3}], 0 offen')
    e(f'buffer_load_ushort v{wtx[1]}, v{t0}, s[{sWI}:{sWI+3}], 0 offen')
    e(f's_lshl_b32 s{s_t0}, s{s_dq}, 9'); e(f's_lshl_b32 s{s_t1}, s{s_t2x}, 8'); e(f's_add_u32 s{s_t0}, s{s_t0}, s{s_t1}'); e(f's_add_u32 s{s_t0}, s{s_t0}, {256*8192}')
    e(f'v_add_u32 v{vwtx}, s{s_t0}, v{vwtx}')
    e.label('L1_nox')
    e(f's_lshl_b32 s{s_sx}, s{s_b}, 10')
    e(f's_mul_i32 s{s_sw}, s{s_w}, {16*2752}'); e(f's_lshl_b32 s{s_t0}, s{s_P}, 6'); e(f's_add_u32 s{s_sw}, s{s_sw}, s{s_t0}')
    e(f's_lshl_b32 s{s_m0x}, s{s_w}, 12'); e(f's_mul_i32 s{s_m0w}, s{s_w}, 3072'); e(f's_add_u32 s{s_m0w}, s{s_m0w}, 16384')
    def dma_list(slot_s, sx, sw):
        out = []
        for i in range(4):
            out.append([f's_add_u32 s{s_t3}, s{slot_s}, s{s_m0x}' if i == 0 else None,
                        f's_add_u32 m0, s{s_t3}, {i*1024}',
                        f'buffer_load_dwordx4 v{vxo[i]}, s[{sX}:{sX+3}], s{sx} offen lds'])
        for mat, sd in ((0, sWG), (1, sWU)):
            for i in range(3):
                out.append([f's_add_u32 s{s_t3}, s{slot_s}, s{s_m0w}' if (i == 0 and mat == 0) else None,
                            f's_add_u32 m0, s{s_t3}, {mat*12320 + i*1024}',
                            f'buffer_load_dwordx4 v{vwo[i]}, s[{sd}:{sd+3}], s{sw} offen lds'])
        return [[x for x in grp if x] for grp in out]
    for st in range(2):
        e(f's_mov_b32 s{s_slotD}, {SLOT0 + st*SLOT_SZ}')
        for grp in dma_list(s_slotD, s_sx, s_sw):
            for x in grp: e(x)
        e(f's_add_u32 s{s_sx}, s{s_sx}, 128'); e(f's_add_u32 s{s_sw}, s{s_sw}, {64*2752}')
    e(f'v_bfe_u32 v{t0}, v{vA}, 1, 3')
    e(f'v_lshlrev_b32 v{t1}, 7, v{vA}')
    e(f's_lshl_b32 s{s_t0}, s{s_w}, 12'); e(f's_add_u32 s{s_t0}, s{s_t0}, {SLOT0}')
    e(f's_xor_b32 s{s_t1}, s{s_w}, 1'); e(f's_lshl_b32 s{s_t1}, s{s_t1}, 12'); e(f's_add_u32 s{s_t1}, s{s_t1}, {SLOT0}')
    for q in range(4):
        e(f's_xor_b32 s{s_t2}, s{s_rh}, {q}'); e(f's_lshl_b32 s{s_t2}, s{s_t2}, 1')
        e(f'v_add_u32 v{t2}, s{s_t2}, v{vH}'); e(f'v_xor_b32 v{t2}, v{t2}, v{t0}'); e(f'v_lshl_add_u32 v{t2}, v{t2}, 4, v{t1}')
        e(f'v_add_u32 v{xa[q]}, s{s_t0}, v{t2}'); e(f'v_add_u32 v{xb[q]}, s{s_t1}, v{t2}')
    e(f'v_bfe_u32 v{t0}, v{l}, 4, 1'); e(f'v_mul_u32_u24 v{t0}, 12320, v{t0}')
    e(f'v_bfe_u32 v{t1}, v{l}, 2, 2'); e(f'v_lshl_add_u32 v{t1}, v{vH}, 3, v{t1}'); e(f'v_mul_u32_u24 v{t1}, 192, v{t1}')
    e(f'v_add_u32 v{t0}, v{t0}, v{t1}'); e(f'v_and_b32 v{t1}, 3, v{l}'); e(f'v_lshl_add_u32 v{t0}, v{t1}, 3, v{t0}')
    e(f's_mul_i32 s{s_t0}, s{s_ch}, 96'); e(f's_add_u32 s{s_t0}, s{s_t0}, {SLOT0 + 16384}'); e(f's_mul_i32 s{s_t1}, s{s_rh}, 3072')
    e(f's_add_u32 s{s_t2}, s{s_t0}, s{s_t1}'); e(f'v_add_u32 v{wa[0]}, s{s_t2}, v{t0}')
    e(f's_sub_u32 s{s_t2}, s{s_t0}, s{s_t1}'); e(f'v_add_u32 v{wa[1]}, s{s_t2}, v{t0}')
    e(f'v_lshlrev_b32 v{t0}, 4, v{l}'); e(f's_lshl_b32 s{s_t1}, s{s_rh}, 10')
    e(f'v_add_u32 v{da[0]}, s{s_t1}, v{t0}'); e(f's_sub_u32 s{s_t1}, 1024, s{s_t1}'); e(f'v_add_u32 v{da[1]}, s{s_t1}, v{t0}')
    vf, ph, ang, f8 = tmp[0], tmp[1], tmp[2], tmp[3]
    c0 = tmp[4]
    e(f'v_lshrrev_b32 v{vf}, 1, v{vA}'); e(f's_lshl_b32 s{s_t0}, s{s_g}, 4'); e(f'v_add_u32 v{vf}, s{s_t0}, v{vf}')
    e(f'v_and_b32 v{ph}, 1, v{vA}')
    e(f'v_cmp_eq_u32 vcc, 0, v{vf}'); e(f'v_cmp_eq_u32 s[{s_t2}:{s_t2+1}], 1, v{ph}'); e(f's_and_b64 vcc, vcc, s[{s_t2}:{s_t2+1}]')
    e(f'v_mov_b32 v{ang}, 0x100'); e(f'v_cndmask_b32 v{vf}, v{vf}, v{ang}, vcc'); e(f'v_cndmask_b32 v{ph}, v{ph}, 0, vcc')
    e(f'v_cvt_f32_u32 v{vf}, v{vf}'); e(f'v_mul_f32 v{vf}, 0x3b000000, v{vf}')
    e(f'v_cvt_f32_u32 v{ph}, v{ph}'); e(f'v_mul_f32 v{ph}, 0x3e800000, v{ph}')
    e(f's_lshl_b32 s{s_t0}, s{s_w}, 7'); e(f'v_lshlrev_b32 v{ang}, 3, v{vH}'); e(f'v_add_u32 v{ang}, s{s_t0}, v{ang}'); e(f'v_cvt_f32_u32 v{ang}, v{ang}')
    e(f'v_fma_f32 v{ang}, v{vf}, v{ang}, v{ph}'); e(f'v_mul_f32 v{f8}, 0x41000000, v{vf}')
    dw = X[0][0]
    e(f'v_lshlrev_b32 v{c0}, 4, v{l}'); e(f's_lshl_b32 s{s_t0}, s{s_w}, 13'); e(f'v_add_u32 v{c0}, s{s_t0}, v{c0}')
    e(f's_mov_b32 s{s_i}, 0')
    e.label('L1_dft')
    for jj in range(8):
        e(f'v_cos_f32 v{dw+4+jj}, v{ang}'); e(f'v_add_f32 v{ang}, v{ang}, v{vf}')
    e(f'v_add_f32 v{ang}, v{ang}, v{f8}')
    for k in range(4): e(f'v_cvt_pk_bf16_f32 v{dw+k}, v{dw+4+2*k}, v{dw+5+2*k}')
    e(f'ds_write_b128 v{c0}, v[{dw}:{dw+3}]'); e(f'v_add_u32 v{c0}, 1024, v{c0}')
    e(f's_add_u32 s{s_i}, s{s_i}, 1'); e(f's_cmp_lt_u32 s{s_i}, 8'); e('s_cbranch_scc1 L1_dft')
    e(f's_cmp_lt_u32 s{s_w}, 2'); e('s_cbranch_scc0 L1_noid')
    e(f's_lshl_b32 s{s_t0}, s2, 1'); e(f's_add_u32 s89, s{s_t0}, s{s_w}')
    e(f's_lshr_b32 s{s_t0}, s89, 5'); e(f's_and_b32 s{s_t1}, s89, 31')
    df, vv, a0 = tmp[0], tmp[1], tmp[2]
    e(f'v_bfe_u32 v{df}, v{vA}, 2, 1'); e(f'v_lshlrev_b32 v{df}, 4, v{df}'); e(f'v_lshrrev_b32 v{vv}, 3, v{vA}'); e(f'v_lshl_add_u32 v{df}, v{vv}, 2, v{df}')
    e(f'v_and_b32 v{vv}, 3, v{vA}'); e(f'v_add_u32 v{df}, v{df}, v{vv}'); e(f's_lshl_b32 s{s_t0}, s{s_t0}, 5'); e(f'v_add_u32 v{df}, s{s_t0}, v{df}')
    e(f'v_and_b32 v{tmp[7]}, 1, v{df}')
    e(f'v_cvt_f32_u32 v{df}, v{df}'); e(f'v_mul_f32 v{df}, 0x3b000000, v{df}')
    e(f's_lshl_b32 s{s_t2}, s{s_t1}, 3'); e(f'v_lshl_add_u32 v{vv}, v{vH}, 1, s{s_t2}'); e(f'v_cvt_f32_u32 v{a0}, v{vv}'); e(f'v_mul_f32 v{a0}, v{a0}, v{df}')
    cw = X[0][0] + 4
    for k, dv in enumerate((0, 1, 4, 5)):
        if dv == 0: e(f'v_mov_b32 v{tmp[3]}, v{a0}')
        elif dv == 1: e(f'v_add_f32 v{tmp[3]}, v{a0}, v{df}')
        elif dv == 4: e(f'v_fma_f32 v{tmp[3]}, 4.0, v{df}, v{a0}')
        else: e(f'v_add_f32 v{tmp[3]}, v{tmp[3]}, v{df}')
        e(f'v_cos_f32 v{cw+2*k}, v{tmp[3]}'); e(f'v_sin_f32 v{cw+2*k+1}, v{tmp[3]}')
    for k in range(8): e(f'v_mul_f32 v{cw+k}, 0x36000000, v{cw+k}')
    e(f'v_cmp_eq_u32 vcc, 0, v{vv}')
    e(f'v_mov_b32 v{tmp[4]}, 0x35800000'); e(f'v_lshlrev_b32 v{tmp[7]}, 31, v{tmp[7]}'); e(f'v_or_b32 v{tmp[5]}, v{tmp[4]}, v{tmp[7]}')
    e(f'v_cndmask_b32 v{cw}, v{cw}, v{tmp[4]}, vcc'); e(f'v_cndmask_b32 v{cw+1}, v{cw+1}, v{tmp[5]}, vcc')
    for k in range(4): e(f'v_cvt_pk_bf16_f32 v{idf+k}, v{cw+2*k}, v{cw+2*k+1}')
    e.label('L1_noid')
    for r in range(128, 240): e(f'v_mov_b32 v{r}, 0')
    for r in (sum0, sum1, sq0, sq1, *cs): e(f'v_mov_b32 v{r}, 0')
    stamp(e, prof, 1, 0, sTS)
    nts = 2 if prof else 0
    e(f's_waitcnt vmcnt({10 + (1 if prof else 0)}) lgkmcnt(0)'); e('s_barrier')
    def reads(buf, q, first=False):
        L = [f'ds_read_b128 v[{X[buf][0]}:{X[buf][0]+3}], v{xa[q]}']
        for hh in range(2): L.append(f'ds_read_b64_tr_b16 v[{W[buf][0]+2*hh}:{W[buf][0]+2*hh+1}], v{wa[q&1]} offset:{q*3072 + hh*768}')
        L.append(f'ds_read_b128 v[{X[buf][1]}:{X[buf][1]+3}], v{xb[q]}')
        for jj in (1, 2):
            for hh in range(2): L.append(f'ds_read_b64_tr_b16 v[{W[buf][jj]+2*hh}:{W[buf][jj]+2*hh+1}], v{wa[q&1]} offset:{q*3072 + jj*32 + hh*768}')
        L.append(f'ds_read_b128 v[{DF[buf]}:{DF[buf]+3}], v{da[q&1]} offset:{(q & ~1)*1024}')
        return L
    for x in reads(0, 0): e(x)
    e(f's_mov_b32 s{s_i}, 0'); e(f's_mov_b32 s{s_slotC}, 0'); e(f's_mov_b32 s{s_slotD}, {SLOT0 + 2*SLOT_SZ}')
    e.label('L1_loop')
    e(f's_add_u32 s{s_t0}, s{s_slotC}, {SLOT_SZ}'); e(f's_cmp_ge_u32 s{s_t0}, {3*SLOT_SZ}'); e(f's_cselect_b32 s{s_t0}, 0, s{s_t0}')
    e(f's_sub_u32 s{s_d}, s{s_t0}, s{s_slotC}'); e(f's_mov_b32 s{s_slotC}, s{s_t0}')
    e(f's_cmp_ge_u32 s{s_i}, 6'); e(f's_cselect_b32 s{s_t1}, 0x7fff0000, s{s_sx}'); e(f's_cselect_b32 s{s_t2}, 0x7fff0000, s{s_sw}')
    dmas = dma_list(s_slotD, s_t1, s_t2)
    def valu_stats(buf):
        L = []
        for k in range(4):
            x = X[buf][0] + k; a, b = tmp[(2*k) % 8], tmp[(2*k+1) % 8]
            L += [f'v_and_b32 v{a}, s{s_mask}, v{x}', f'v_lshlrev_b32 v{b}, 16, v{x}',
                  f'v_add_f32 v{sum0}, v{sum0}, v{a}', f'v_add_f32 v{sum1}, v{sum1}, v{b}',
                  f'v_fmac_f32 v{sq0}, v{a}, v{a}', f'v_fmac_f32 v{sq1}, v{b}, v{b}']
        return L
    def valu_cs(buf, jj):
        L = []
        for k in range(4):
            x = W[buf][jj] + k; a, b = tmp[(2*k) % 8], tmp[(2*k+1) % 8]
            L += [f'v_and_b32 v{a}, s{s_mask}, v{x}', f'v_lshlrev_b32 v{b}, 16, v{x}',
                  f'v_add_f32 v{cs[jj]}, v{cs[jj]}, v{a}', f'v_add_f32 v{cs[jj]}, v{cs[jj]}, v{b}']
        return L
    for q in range(4):
        buf = q & 1; nb = buf ^ 1; nq = (q + 1) & 3
        mf = []
        for jj in range(3):
            for idx in range(2):
                a = accM[jj][idx]
                mf.append(f'v_mfma_f32_32x32x16_bf16 v[{a}:{a+15}], v[{W[buf][jj]}:{W[buf][jj]+3}], v[{X[buf][idx]}:{X[buf][idx]+3}], v[{a}:{a+15}]')
        mf.append(f'v_mfma_f32_32x32x16_bf16 v[{accD}:{accD+15}], v[{DF[buf]}:{DF[buf]+3}], v[{X[buf][0]}:{X[buf][0]+3}], v[{accD}:{accD+15}]')
        valu = valu_stats(buf)
        for jj in range(3):
            if (q + jj) % 2 == 0: valu += valu_cs(buf, jj)
        rd = reads(nb, nq)
        upd = []
        if q == 0: upd = [f'v_add_u32 v{xa[0]}, s{s_d}, v{xa[0]}', f'v_add_u32 v{xb[0]}, s{s_d}, v{xb[0]}']
        if q == 1: upd = [f'v_add_u32 v{xa[1]}, s{s_d}, v{xa[1]}', f'v_add_u32 v{xb[1]}, s{s_d}, v{xb[1]}']
        if q == 2: upd = [f'v_add_u32 v{xa[2]}, s{s_d}, v{xa[2]}', f'v_add_u32 v{xb[2]}, s{s_d}, v{xb[2]}',
                          f'v_add_u32 v{wa[0]}, s{s_d}, v{wa[0]}', f'v_add_u32 v{da[0]}, 0x1000, v{da[0]}']
        if q == 3: upd = [f'v_add_u32 v{xa[3]}, s{s_d}, v{xa[3]}', f'v_add_u32 v{xb[3]}, s{s_d}, v{xb[3]}',
                          f'v_add_u32 v{wa[1]}, s{s_d}, v{wa[1]}', f'v_add_u32 v{da[1]}, 0x1000, v{da[1]}']
        e('s_waitcnt lgkmcnt(0)')
        gaps = [[] for _ in range(7)]
        if q == 3:
            gaps[1] += ['s_waitcnt vmcnt(10)', 's_barrier']
            for k, x in enumerate(rd): gaps[1 + min(4, (k * 5) // 9)].append(x)
            pre = upd
        else:
            for k, x in enumerate(rd): gaps[min(4, (k * 5) // 9)].append(x)
            pre = upd
        if q in (0, 1):
            for k, grp in enumerate(dmas[5*q:5*q+5]): gaps[1 + k] += grp
        vl = list(valu)
        per = [vl[(len(vl)*i)//7:(len(vl)*(i+1))//7] for i in range(7)]
        for i in range(7): gaps[i] += per[i]
        gaps[6] += pre
        for i in range(7):
            e(mf[i])
            for x in gaps[i]: e(x)
    e(f's_add_u32 s{s_sx}, s{s_sx}, 128'); e(f's_add_u32 s{s_sw}, s{s_sw}, {64*2752}')
    e(f's_add_u32 s{s_slotD}, s{s_slotD}, {SLOT_SZ}'); e(f's_cmp_ge_u32 s{s_slotD}, {SLOT0 + 3*SLOT_SZ}'); e(f's_cselect_b32 s{s_slotD}, {SLOT0}, s{s_slotD}')
    e(f's_add_u32 s{s_i}, s{s_i}, 1'); e(f's_cmp_lt_u32 s{s_i}, 8'); e('s_cbranch_scc1 L1_loop')
    e('s_waitcnt vmcnt(0) lgkmcnt(0)')
    stamp(e, prof, 2, 0, sTS)
    a, b, c, d = tmp[0:4]
    e(f'v_add_f32 v{sum0}, v{sum0}, v{sum1}'); e(f'v_add_f32 v{sq0}, v{sq0}, v{sq1}')
    e(f'v_mov_b32 v{a}, v{sum0}'); e(f'v_mov_b32 v{b}, v{sq0}')
    e(f'v_permlane32_swap_b32 v{sum0}, v{a}'); e(f'v_permlane32_swap_b32 v{sq0}, v{b}')
    e(f'v_add_f32 v{sum0}, v{sum0}, v{a}'); e(f'v_add_f32 v{sq0}, v{sq0}, v{b}')
    e(f'v_mul_f32 v{sum0}, 0x3b000000, v{sum0}')
    e(f'v_mul_f32 v{sq0}, 0x3b000000, v{sq0}')
    e(f'v_fma_f32 v{sq0}, -v{sum0}, v{sum0}, v{sq0}'); e(f'v_max_f32 v{sq0}, 0, v{sq0}')
    e(f'v_cvt_pk_bf16_f32 v{a}, v{sq0}, v{sq0}'); e(f'v_and_b32 v{a}, s{s_mask}, v{a}'); e(f'v_add_f32 v{a}, 0x3727c5ac, v{a}')
    e(f'v_cvt_pk_bf16_f32 v{a}, v{a}, v{a}'); e(f'v_and_b32 v{a}, s{s_mask}, v{a}'); e(f'v_sqrt_f32 v{a}, v{a}')
    e(f'v_cvt_pk_bf16_f32 v{a}, v{a}, v{a}'); e(f'v_and_b32 v{a}, s{s_mask}, v{a}')
    NM0, R0, NM1, R1 = 12, 13, 14, 15
    e(f'v_rcp_f32 v{R0}, v{a}')
    e(f'v_cvt_pk_bf16_f32 v{NM0}, -v{sum0}, -v{sum0}')
    e(f'v_lshlrev_b32 v{b}, 3, v{l}'); e(f's_lshl_b32 s{s_t0}, s{s_w}, 9'); e(f's_add_u32 s{s_t0}, s{s_t0}, {SCR}'); e(f'v_add_u32 v{c}, s{s_t0}, v{b}')
    e(f's_xor_b32 s{s_t0}, s{s_w}, 1'); e(f's_lshl_b32 s{s_t0}, s{s_t0}, 9'); e(f's_add_u32 s{s_t0}, s{s_t0}, {SCR}'); e(f'v_add_u32 v{d}, s{s_t0}, v{b}')
    e(f'ds_write_b64 v{c}, v[{NM0}:{R0}]')
    e(f'v_lshlrev_b32 v{b}, 4, v{l}'); e(f's_lshl_b32 s{s_t0}, s{s_w}, 10'); e(f's_add_u32 s{s_t0}, s{s_t0}, {SCR + 2048}'); e(f'v_add_u32 v{tmp[4]}, s{s_t0}, v{b}')
    e(f's_xor_b32 s{s_t0}, s{s_w}, 2'); e(f's_lshl_b32 s{s_t0}, s{s_t0}, 10'); e(f's_add_u32 s{s_t0}, s{s_t0}, {SCR + 2048}'); e(f'v_add_u32 v{tmp[5]}, s{s_t0}, v{b}')
    e(f'ds_write_b128 v{tmp[4]}, v[{cs[0]}:{cs[0]+3}]')
    e('s_waitcnt lgkmcnt(0)'); e('s_barrier')
    e(f'ds_read_b64 v[{NM1}:{R1}], v{d}'); e(f'ds_read_b128 v[{DF[0]}:{DF[0]+3}], v{tmp[5]}')
    for k in range(1, 4):
        e(f'v_mov_b32 v{X[0][0]+k}, 0'); e(f'v_mov_b32 v{X[0][1]+k}, 0')
        for jj in range(3): e(f'v_mov_b32 v{W[0][jj]+k}, 0')
        e(f'v_mov_b32 v{DF[1]+k}, 0')
    e(f'v_mov_b32 v{X[0][0]}, v{NM0}')
    e(f's_cmp_eq_u32 s{s_g}, 0'); e(f's_cselect_b32 s{s_t0}, 0x4400, 0'); e(f'v_mov_b32 v{a}, s{s_t0}')
    e(f'v_cmp_eq_u32 vcc, 0, v{l}'); e(f'v_cndmask_b32 v{DF[1]}, 0, v{a}, vcc')
    e('s_waitcnt lgkmcnt(0)')
    e(f'v_mov_b32 v{X[0][1]}, v{NM1}')
    for jj in range(3):
        e(f'v_add_f32 v{a}, v{cs[jj]}, v{DF[0]+jj}')
        e(f'v_cvt_pk_bf16_f32 v{b}, v{a}, v{a}'); e(f'v_and_b32 v{b}, s{s_mask}, v{b}'); e(f'v_sub_f32 v{c}, v{a}, v{b}')
        e(f'v_cvt_pk_bf16_f32 v{W[0][jj]}, v{b}, v{c}')
    for jj in range(3):
        for idx in range(2):
            ac = accM[jj][idx]
            e(f'v_mfma_f32_32x32x16_bf16 v[{ac}:{ac+15}], v[{W[0][jj]}:{W[0][jj]+3}], v[{X[0][idx]}:{X[0][idx]+3}], v[{ac}:{ac+15}]')
    e(f'v_mfma_f32_32x32x16_bf16 v[{accD}:{accD+15}], v[{DF[1]}:{DF[1]+3}], v[{X[0][0]}:{X[0][0]+3}], v[{accD}:{accD+15}]')
    R20, R21 = tmp[6], tmp[7]
    e(f'v_mul_f32 v{R20}, v{R0}, v{R0}'); e(f'v_mul_f32 v{R21}, v{R1}, v{R1}')
    e(f'v_lshlrev_b32 v{vxo[0]}, 4, v{l}')
    e(f'v_lshlrev_b32 v{vxo[1]}, 2, v{vA}'); e(f'v_lshl_add_u32 v{vxo[1]}, v{vH}, 14, v{vxo[1]}')
    e(f's_lshl_b32 s{s_t0}, s{s_P}, 1'); e(f's_mul_i32 s{s_t1}, s{s_ch}, 3'); e(f's_add_u32 s{s_t0}, s{s_t0}, s{s_t1}')
    for idx in range(2):
        if idx == 0: e(f's_mul_i32 s{s_t1}, s{s_b}, 86')
        else: e(f's_xor_b32 s{s_t1}, s{s_b}, 1'); e(f's_mul_i32 s{s_t1}, s{s_t1}, 86')
        e(f's_add_u32 s{s_t1}, s{s_t1}, s{s_t0}'); e(f's_lshl_b32 s{s_t1}, s{s_t1}, 10')
        r2 = R20 if idx == 0 else R21
        for jj in range(3):
            ac = accM[jj][idx]
            o = W[1][jj]
            for j in range(8):
                e(f'v_max_f32 v{ac+j}, 0, v{ac+j}'); e(f'v_mul_f32 v{ac+8+j}, v{r2}, v{ac+8+j}'); e(f'v_mul_f32 v{ac+j}, v{ac+j}, v{ac+8+j}')
            for k in range(4): e(f'v_cvt_pk_bf16_f32 v{o+k}, v{ac+2*k}, v{ac+2*k+1}')
            e(f'buffer_store_dwordx4 v[{o}:{o+3}], v{vxo[0]}, s[{sH}:{sH+3}], s{s_t1} offen offset:{jj*1024}')
    e(f's_lshl_b32 s{s_t0}, s{s_g}, 17'); e(f's_lshl_b32 s{s_t1}, s{s_b}, 7'); e(f's_add_u32 s{s_t0}, s{s_t0}, s{s_t1}')
    for q in range(4):
        for ip in range(2):
            j = 4*q + 2*ip
            e(f'v_mul_f32 v{accD+j}, v{R0}, v{accD+j}'); e(f'v_mul_f32 v{accD+j+1}, v{R0}, v{accD+j+1}')
            e(f'v_cvt_pk_bf16_f32 v{accD+j}, v{accD+j}, v{accD+j+1}')
            e(f's_add_u32 s{s_t1}, s{s_t0}, {(4*q+ip)*8192}')
            e(f'buffer_store_dword v{accD+j}, v{vxo[1]}, s[{sX1}:{sX1+3}], s{s_t1} offen')
    for nn in range(2):
        for dj in range(4):
            e(f'v_lshl_or_b32 v{wtraw[nn*4+dj]}, v{wtraw[8+nn*4+dj]}, 16, v{wtraw[nn*4+dj]}')
        e(f'buffer_store_dwordx4 v[{wtraw[nn*4]}:{wtraw[nn*4]+3}], v{vwta}, s[{sWT}:{sWT+3}], 0 offen offset:{nn*16}')
    e(f's_cmp_eq_u32 s88, 1'); e('s_cbranch_scc0 L1_nox2')
    e(f'v_lshl_or_b32 v{wtx[0]}, v{wtx[1]}, 16, v{wtx[0]}')
    e(f'buffer_store_dword v{wtx[0]}, v{vwtx}, s[{sWT}:{sWT+3}], 0 offen')
    e.label('L1_nox2')
    e(f's_cmp_lt_u32 s{s_w}, 2'); e('s_cbranch_scc0 L1_noid2')
    e(f's_lshl_b32 s{s_t0}, s89, 10')
    e(f'buffer_store_dwordx4 v[{idf}:{idf+3}], v{vxo[0]}, s[{sID}:{sID+3}], s{s_t0} offen')
    e.label('L1_noid2')
    if prof:
        e('s_waitcnt vmcnt(0)'); stamp(e, prof, 3, 0, sTS)
    e.label('L1_done'); e('s_endpgm')
    return e.L, SCR + 6144

def k2(prof=False):
    e = Em()
    sX1, sWT, sY1, sTS = 8, 12, 16, 20
    s_w, s_v, s_sh, s_msk, s_mask = 24, 25, 26, 27, 28
    s_t0, s_t1, s_t2 = 30, 31, 32
    vL, vN, vG = 1, 2, 3
    t = list(range(4, 16))
    DA = [16, 20]
    WW = [24, 28]
    G = lambda ri, to, ti: 32 + 16*ri + 8*to + 4*ti
    H = lambda ri, kk: 64 + 16*ri + 4*kk
    TWF = 96
    TWI = 112
    AC = lambda ri, tt: 128 + 8*ri + 4*tt
    EX = [144, 148]
    BF = lambda kk, tt: 152 + 8*kk + 4*tt
    WU = 184
    e('s_cmp_ge_u32 s2, 257'); e('s_cbranch_scc1 L2_done')
    e('s_load_dwordx2 s[4:5], s[0:1], 72')
    e(f'v_and_b32 v{vL}, 63, v0'); e(f'v_lshrrev_b32 v{t[0]}, 6, v0'); e(f'v_and_b32 v{vN}, 15, v0'); e(f'v_bfe_u32 v{vG}, v0, 4, 2')
    e(f'v_readfirstlane_b32 s{s_w}, v{t[0]}')
    e(f's_and_b32 s{s_v}, s2, 255')
    e(f's_cmp_eq_u32 s2, 256'); e(f's_cselect_b32 s{s_sh}, 16, 0')
    e(f's_cmp_eq_u32 s{s_v}, 0'); e(f's_cselect_b32 s{s_msk}, 0xffff, -1')
    e(f's_mov_b32 s{s_mask}, 0xffff0000')
    e(f'v_lshlrev_b32 v{t[0]}, 7, v{vN}'); e(f'v_lshl_add_u32 v{t[0]}, v{vG}, 5, v{t[0]}')
    e(f's_lshl_b32 s{s_t0}, s{s_v}, 13'); e(f's_lshl_b32 s{s_t1}, s{s_w}, 11'); e(f's_add_u32 s{s_t0}, s{s_t0}, s{s_t1}')
    e(f'v_lshlrev_b32 v{t[1]}, 4, v{vN}'); e(f'v_lshl_add_u32 v{t[1]}, v{vG}, 9, v{t[1]}')
    e(f's_lshl_b32 s{s_t2}, s2, 13'); e(f's_add_u32 s{s_t2}, s{s_t2}, s{s_t1}')
    e('s_waitcnt lgkmcnt(0)')
    srd(e, sX1, 4, 5, X1_SZ, X1_OFF); srd(e, sWT, 4, 5, WT_SZ, WT_OFF); srd(e, sY1, 4, 5, Y1_SZ, Y1_OFF)
    if prof: srd(e, sTS, 4, 5, 0x10000, TS_OFF)
    stamp(e, prof, 0, 1, sTS)
    for ti in range(2): e(f'buffer_load_dwordx4 v[{DA[ti]}:{DA[ti]+3}], v{t[0]}, s[{sX1}:{sX1+3}], s{s_t0} offen offset:{16*ti}', vm='da')
    for tt in range(2): e(f'buffer_load_dwordx4 v[{WW[tt]}:{WW[tt]+3}], v{t[1]}, s[{sWT}:{sWT+3}], s{s_t2} offen offset:{256*tt}', vm='ww')
    def cs_pair(ang, re, im):
        e(f'v_cos_f32 v{t[8]}, v{ang}'); e(f'v_sin_f32 v{t[9]}, v{ang}')
        e(f'v_cvt_pk_bf16_f32 v{re}, v{t[8]}, v{t[9]}'); e(f'v_cvt_pk_bf16_f32 v{im}, -v{t[9]}, v{t[8]}')
    ob, of, an, g8 = t[2], t[3], t[4], t[5]
    e(f'v_lshrrev_b32 v{ob}, 2, v{vN}'); e(f'v_lshlrev_b32 v{ob}, 3, v{ob}'); e(f'v_and_b32 v{an}, 3, v{vN}'); e(f'v_add_u32 v{ob}, v{ob}, v{an}')
    e(f'v_lshlrev_b32 v{g8}, 3, v{vG}'); e(f'v_cvt_f32_u32 v{g8}, v{g8}')
    PI0 = t[10]
    e(f'v_cvt_f32_u32 v{PI0}, v{ob}')
    for to in range(2):
        if to == 0: e(f'v_mul_f32 v{of}, 0x3d000000, v{PI0}')
        else: e(f'v_add_f32 v{of}, 4.0, v{PI0}'); e(f'v_mul_f32 v{of}, 0x3d000000, v{of}')
        e(f'v_mul_f32 v{an}, v{of}, v{g8}')
        for k in range(8):
            ti, i = k >> 2, k & 3
            cs_pair(an, G(0, to, ti) + i, G(1, to, ti) + i)
            if k < 7: e(f'v_add_f32 v{an}, v{an}, v{of}')
    OUTF = t[11]
    e(f's_lshl_b32 s{s_t0}, s{s_w}, 4'); e(f'v_add_u32 v{ob}, s{s_t0}, v{vN}'); e(f'v_cvt_f32_u32 v{OUTF}, v{ob}')
    e(f'v_mul_f32 v{of}, 0x3c800000, v{OUTF}')
    e(f'v_mul_f32 v{an}, 0.5, v{g8}')
    G4 = t[7]
    e(f'v_mov_b32 v{G4}, v{an}')
    e(f'v_mul_f32 v{an}, v{an}, v{of}')
    e(f'v_mul_f32 v{t[6]}, 0x41400000, v{of}')
    for kk in range(4):
        for i in range(4):
            cs_pair(an, H(0, kk) + i, H(1, kk) + i)
            e(f'v_add_f32 v{an}, v{an}, v{of}')
        if kk < 3: e(f'v_add_f32 v{an}, v{an}, v{t[6]}')
    e(f's_lshl_b32 s{s_t0}, s{s_w}, 4'); e(f'v_cvt_f32_u32 v{an}, s{s_t0}'); e(f'v_add_f32 v{t[6]}, v{an}, v{G4}')
    for tt in range(2):
        if tt == 0: e(f'v_mul_f32 v{of}, 0x3a000000, v{PI0}')
        else: e(f'v_add_f32 v{of}, 4.0, v{PI0}'); e(f'v_mul_f32 v{of}, 0x3a000000, v{of}')
        e(f'v_mul_f32 v{an}, v{of}, v{t[6]}')
        for j in range(4):
            e(f'v_cos_f32 v{TWF+4*tt+j}, v{an}'); e(f'v_sin_f32 v{TWF+8+4*tt+j}, v{an}')
            if j < 3: e(f'v_add_f32 v{an}, v{an}, v{of}')
    e(f'v_mul_f32 v{of}, 0x3a000000, v{OUTF}'); e(f'v_mul_f32 v{an}, v{of}, v{g8}')
    for k in range(8):
        e(f'v_cos_f32 v{TWI+k}, v{an}'); e(f'v_sin_f32 v{TWI+8+k}, v{an}')
        if k < 7: e(f'v_add_f32 v{an}, v{an}, v{of}')
    vEW, vER = t[0], t[1]
    e(f'v_lshlrev_b32 v{vER}, 4, v{vL}'); e(f's_lshl_b32 s{s_t0}, s{s_w}, 11'); e(f'v_add_u32 v{vEW}, s{s_t0}, v{vER}')
    vY = t[2]
    e(f'v_lshlrev_b32 v{vY}, 6, v{vN}'); e(f'v_lshl_add_u32 v{vY}, v{vG}, 4, v{vY}'); e(f's_lshl_b32 s{s_t0}, s{s_w}, 10'); e(f'v_add_u32 v{vY}, s{s_t0}, v{vY}')
    e.wait_vm('da')
    for ti in range(2):
        for k in range(4):
            e(f'v_lshrrev_b32 v{DA[ti]+k}, s{s_sh}, v{DA[ti]+k}'); e(f'v_and_b32 v{DA[ti]+k}, s{s_msk}, v{DA[ti]+k}')
    stamp(e, prof, 1, 1, sTS)
    def mf(d, a, b, first): e(f'v_mfma_f32_16x16x32_bf16 v[{d}:{d+3}], v[{a}:{a+3}], v[{b}:{b+3}], ' + ('0' if first else f'v[{d}:{d+3}]'))
    for ti in range(2):
        for ri in range(2):
            for to in range(2): mf(AC(ri, to), DA[ti], G(ri, to, ti), ti == 0)
    def twiddle(TW):
        for tt in range(2):
            for j in range(4):
                r, i, c, s = AC(0, tt) + j, AC(1, tt) + j, TW + 4*tt + j, TW + 8 + 4*tt + j
                e(f'v_mul_f32 v{t[8]}, v{r}, v{c}'); e(f'v_mul_f32 v{t[9]}, v{i}, v{c}')
                e(f'v_fma_f32 v{t[8]}, v{i}, v{s}, v{t[8]}'); e(f'v_fma_f32 v{t[9]}, -v{r}, v{s}, v{t[9]}')
                e(f'v_cvt_pk_bf16_f32 v{EX[tt]+j}, v{t[8]}, v{t[9]}')
    def exchange(base, first):
        for tt in range(2): e(f'ds_write_b128 v{vEW}, v[{EX[tt]}:{EX[tt]+3}] offset:{base + 1024*tt}')
        e('s_waitcnt lgkmcnt(0)'); e('s_barrier')
        for kk in range(4):
            for tt in range(2): e(f'ds_read_b128 v[{BF(kk,tt)}:{BF(kk,tt)+3}], v{vER} offset:{base + 2048*kk + 1024*tt}', lg=('bf', kk))
    twiddle(TWF)
    exchange(0, True)
    e.wait_vm('ww')
    for tt in range(2):
        for j in range(4):
            e(f'v_lshlrev_b32 v{WU+4*tt+j}, 16, v{WW[tt]+j}'); e(f'v_and_b32 v{WU+8+4*tt+j}, s{s_mask}, v{WW[tt]+j}')
    for kk in range(4):
        e.wait_lg(('bf', kk))
        for ri in range(2):
            for tt in range(2): mf(AC(ri, tt), H(ri, kk), BF(kk, tt), kk == 0)
    for tt in range(2):
        for j in range(4):
            r, i, wr, wi = AC(0, tt) + j, AC(1, tt) + j, WU + 4*tt + j, WU + 8 + 4*tt + j
            e(f'v_mul_f32 v{t[8]}, v{r}, v{wr}'); e(f'v_mul_f32 v{t[9]}, -v{r}, v{wi}')
            e(f'v_fma_f32 v{t[8]}, -v{i}, v{wi}, v{t[8]}'); e(f'v_fma_f32 v{t[9]}, -v{i}, v{wr}, v{t[9]}')
            e(f'v_cvt_pk_bf16_f32 v{EX[tt]+j}, v{t[8]}, v{t[9]}')
    exchange(8192, False)
    for kk in range(4):
        e.wait_lg(('bf', kk))
        for ri in range(2):
            for tt in range(2): mf(AC(ri, tt), BF(kk, tt), H(ri, kk), kk == 0)
    twiddle(TWI)
    for ti in range(2):
        for ri in range(2):
            for to in range(2): mf(AC(ri, to), G(ri, to, ti), EX[ti], ti == 0)
    e(f's_lshl_b32 s{s_t0}, s{s_v}, 13'); e(f's_cmp_eq_u32 s2, 256'); e(f's_cselect_b32 s{s_t0}, 4096, s{s_t0}')
    e(f's_add_u32 s{s_t1}, s{s_t0}, 4096'); e(f's_cmp_eq_u32 s{s_v}, 0'); e(f's_cselect_b32 s{s_t1}, 0x7fff0000, s{s_t1}')
    for ri in range(2):
        o = BF(ri, 0)
        e(f'v_cvt_pk_bf16_f32 v{o}, v{AC(ri,0)}, v{AC(ri,0)+1}'); e(f'v_cvt_pk_bf16_f32 v{o+1}, v{AC(ri,0)+2}, v{AC(ri,0)+3}')
        e(f'v_cvt_pk_bf16_f32 v{o+2}, v{AC(ri,1)}, v{AC(ri,1)+1}'); e(f'v_cvt_pk_bf16_f32 v{o+3}, v{AC(ri,1)+2}, v{AC(ri,1)+3}')
        e(f'buffer_store_dwordx4 v[{o}:{o+3}], v{vY}, s[{sY1}:{sY1+3}], s{s_t0 if ri == 0 else s_t1} offen')
    if prof:
        e('s_waitcnt vmcnt(0)'); stamp(e, prof, 3, 1, sTS)
    e.label('L2_done'); e('s_endpgm')
    return e.L, 16384

def k3(prof=False, R=8):
    e = Em()
    SLOT = 16384
    sWD, sH, sY1, sID, sX, sO, sTS = 8, 12, 16, 20, 24, 28, 32
    s_w, s_bp, s_ct, s_dt, s_b = 36, 37, 38, 39, 40
    s_t0, s_t1, s_t2, s_t3 = 42, 43, 44, 45
    s_i, s_sl, s_slD, s_d = 46, 47, 48, 49
    s_tr, s_l0, s_l1 = 50, 51, 52
    s_m0 = 53
    vL, vA, vH = 1, 2, 3
    vtrD, vtrE, vlin = 4, 5, 6
    rtr, rlin = 7, 8
    rtrE, rlinE = 9, 10
    t = list(range(12, 24))
    TR = [24 + 8*q for q in range(4)]; LN = [28 + 8*q for q in range(4)]
    acc = 64
    XR = [80, 84]
    e('s_cmp_ge_u32 s2, 256'); e('s_cbranch_scc1 L3_done')
    e('s_load_dwordx2 s[4:5], s[0:1], 72'); e('s_load_dwordx4 s[56:59], s[0:1], 48'); e('s_load_dwordx2 s[6:7], s[0:1], 0')
    e(f'v_and_b32 v{vL}, 63, v0'); e(f'v_lshrrev_b32 v{t[0]}, 6, v0'); e(f'v_and_b32 v{vA}, 31, v0'); e(f'v_bfe_u32 v{vH}, v0, 5, 1')
    e(f'v_readfirstlane_b32 s{s_w}, v{t[0]}')
    e(f's_and_b32 s{s_t0}, s2, 7'); e(f's_lshr_b32 s{s_t1}, s2, 3')
    e(f's_lshl_b32 s{s_bp}, s{s_t0}, 2'); e(f's_and_b32 s{s_t2}, s{s_t1}, 3'); e(f's_add_u32 s{s_bp}, s{s_bp}, s{s_t2}'); e(f's_lshr_b32 s{s_ct}, s{s_t1}, 2')
    e(f's_lshr_b32 s{s_dt}, s{s_w}, 1'); e(f's_and_b32 s{s_b}, s{s_w}, 1')
    e(f'v_lshrrev_b32 v{t[0]}, 3, v{vL}'); e(f'v_and_b32 v{t[1]}, 7, v{vL}'); e(f'v_bfe_u32 v{t[2]}, v{vL}, 4, 1'); e(f'v_lshlrev_b32 v{t[2]}, 2, v{t[2]}')
    e(f'v_xor_b32 v{t[1]}, v{t[1]}, v{t[2]}'); e(f'v_lshlrev_b32 v{t[1]}, 4, v{t[1]}')
    e(f'v_lshl_add_u32 v{vtrD}, v{t[0]}, 10, v{t[1]}'); e(f'v_lshl_add_u32 v{vtrE}, v{t[0]}, 12, v{t[1]}')
    e(f'v_lshlrev_b32 v{vlin}, 4, v{vL}')
    e(f'v_bfe_u32 v{t[0]}, v{vL}, 2, 2'); e(f'v_lshl_add_u32 v{t[1]}, v{vH}, 2, v{t[0]}'); e(f'v_lshlrev_b32 v{t[1]}, 7, v{t[1]}')
    e(f'v_bfe_u32 v{t[2]}, v{vL}, 3, 1')
    e(f'v_bfe_u32 v{t[3]}, v{vL}, 4, 1'); e(f'v_and_b32 v{t[4]}, 3, v{vL}')
    e(f'v_xor_b32 v{t[5]}, s{s_dt}, v{t[2]}'); e(f'v_lshl_add_u32 v{t[5]}, v{t[5]}, 6, v{t[1]}')
    e(f'v_and_b32 v{t[6]}, 1, v{t[4]}'); e(f'v_lshlrev_b32 v{t[6]}, 5, v{t[6]}'); e(f'v_lshl_add_u32 v{t[6]}, v{t[3]}, 4, v{t[6]}')
    e(f'v_lshrrev_b32 v{t[7]}, 1, v{t[4]}'); e(f'v_lshl_add_u32 v{t[6]}, v{t[7]}, 3, v{t[6]}'); e(f'v_add_u32 v{rtr}, v{t[5]}, v{t[6]}')
    e(f'v_xor_b32 v{t[5]}, s{s_b}, v{t[2]}'); e(f'v_lshl_add_u32 v{t[5]}, v{t[5]}, 6, v{t[1]}')
    e(f'v_lshlrev_b32 v{t[6]}, 5, v{t[3]}'); e(f'v_lshl_add_u32 v{t[6]}, v{t[4]}, 3, v{t[6]}'); e(f'v_add_u32 v{rtrE}, v{t[5]}, v{t[6]}')
    e(f's_lshl_b32 s{s_t0}, s{s_b}, 10'); e(f's_add_u32 s{s_t0}, s{s_t0}, 2048'); e(f'v_add_u32 v{rlin}, s{s_t0}, v{vlin}')
    e(f's_lshl_b32 s{s_t0}, s{s_dt}, 10'); e(f's_add_u32 s{s_t0}, s{s_t0}, 2048'); e(f'v_add_u32 v{rlinE}, s{s_t0}, v{vlin}')
    e('s_waitcnt lgkmcnt(0)')
    srd(e, sWD, 56, 57, 1376*1024); srd(e, sO, 58, 59, 2048*1024); srd(e, sX, 6, 7, 2048*1024)
    srd(e, sH, 4, 5, H_SZ, H_OFF); srd(e, sY1, 4, 5, Y1_SZ, Y1_OFF); srd(e, sID, 4, 5, ID_SZ, ID_OFF)
    if prof: srd(e, sTS, 4, 5, 0x10000, TS_OFF)
    stamp(e, prof, 0, 2, sTS)
    e(f'v_lshrrev_b32 v{t[0]}, 3, v{vL}'); e(f's_lshl_b32 s{s_t0}, s{s_w}, 4'); e(f'v_add_u32 v{t[0]}, s{s_t0}, v{t[0]}')
    e(f'v_and_b32 v{t[1]}, 31, v{t[0]}'); e(f'v_lshrrev_b32 v{t[2]}, 5, v{t[0]}')
    e(f'v_lshlrev_b32 v{t[1]}, 16, v{t[1]}'); e(f'v_lshl_add_u32 v{t[1]}, v{t[2]}, 10, v{t[1]}')
    e(f'v_and_b32 v{t[2]}, 7, v{vL}'); e(f'v_lshl_add_u32 v{t[1]}, v{t[2]}, 4, v{t[1]}')
    e(f's_lshl_b32 s{s_t0}, s{s_bp}, 11'); e(f's_lshl_b32 s{s_t1}, s{s_ct}, 7'); e(f's_add_u32 s{s_t0}, s{s_t0}, s{s_t1}')
    vO = 11
    e(f'v_add_u32 v{vO}, s{s_t0}, v{t[1]}')
    s_8r = 54
    e(f's_mov_b32 s{s_8r}, {8*65536}')
    e(f'buffer_load_dwordx4 v[{XR[0]}:{XR[0]+3}], v{vO}, s[{sX}:{sX+3}], 0 offen')
    e(f'buffer_load_dwordx4 v[{XR[1]}:{XR[1]+3}], v{vO}, s[{sX}:{sX+3}], s{s_8r} offen')
    e(f's_lshl_b32 s{s_tr}, s{s_w}, 14'); e(f's_lshl_b32 s{s_t0}, s{s_ct}, 7'); e(f's_add_u32 s{s_tr}, s{s_tr}, s{s_t0}')
    e(f's_mul_i32 s{s_l0}, s{s_bp}, {2*86}'); e(f's_add_u32 s{s_l0}, s{s_l0}, s{s_w}'); e(f's_lshl_b32 s{s_l0}, s{s_l0}, 10'); e(f's_add_u32 s{s_l1}, s{s_l0}, {86*1024}')
    e(f's_lshl_b32 s{s_m0}, s{s_w}, 12')
    def dma_D(slot_s):
        return [f's_add_u32 s{s_t3}, s{slot_s}, s{s_m0}',
                f's_mov_b32 m0, s{s_t3}', f'buffer_load_dwordx4 v{vtrD}, s[{sWD}:{sWD+3}], s{s_tr} offen lds',
                f's_add_u32 m0, s{s_t3}, 1024', f's_add_u32 s{s_t2}, s{s_tr}, 8192', f'buffer_load_dwordx4 v{vtrD}, s[{sWD}:{sWD+3}], s{s_t2} offen lds',
                f's_add_u32 m0, s{s_t3}, 2048', f'buffer_load_dwordx4 v{vlin}, s[{sH}:{sH+3}], s{s_l0} offen lds',
                f's_add_u32 m0, s{s_t3}, 3072', f'buffer_load_dwordx4 v{vlin}, s[{sH}:{sH+3}], s{s_l1} offen lds',
                f's_add_u32 s{s_tr}, s{s_tr}, 65536', f's_add_u32 s{s_l0}, s{s_l0}, 4096', f's_add_u32 s{s_l1}, s{s_l1}, 4096']
    def dma_E(slot_s):
        return [f's_add_u32 s{s_t3}, s{slot_s}, s{s_m0}',
                f's_mov_b32 m0, s{s_t3}', f'buffer_load_dwordx4 v{vtrE}, s[{sY1}:{sY1+3}], s{s_tr} offen lds',
                f's_add_u32 m0, s{s_t3}, 1024', f's_add_u32 s{s_t2}, s{s_tr}, 32768', f'buffer_load_dwordx4 v{vtrE}, s[{sY1}:{sY1+3}], s{s_t2} offen lds',
                f's_add_u32 m0, s{s_t3}, 2048', f'buffer_load_dwordx4 v{vlin}, s[{sID}:{sID+3}], s{s_l0} offen lds',
                f's_add_u32 m0, s{s_t3}, 3072', f'buffer_load_dwordx4 v{vlin}, s[{sID}:{sID+3}], s{s_l1} offen lds',
                f's_add_u32 s{s_tr}, s{s_tr}, 262144', f's_add_u32 s{s_l0}, s{s_l0}, 4096', f's_add_u32 s{s_l1}, s{s_l1}, 4096']
    def set_E():
        return [f's_lshl_b32 s{s_tr}, s{s_w}, 16', f's_lshl_b32 s{s_t0}, s{s_bp}, 7', f's_add_u32 s{s_tr}, s{s_tr}, s{s_t0}',
                f's_lshl_b32 s{s_l0}, s{s_ct}, 6', f's_add_u32 s{s_l0}, s{s_l0}, s{s_w}', f's_lshl_b32 s{s_l0}, s{s_l0}, 10', f's_add_u32 s{s_l1}, s{s_l0}, 32768']
    ND, NE = 22, 8
    NS = ND + NE
    def issue(st, slot_s):
        if st < ND:
            L = dma_D(slot_s)
            if st == ND - 1:
                pre = [f's_cmp_ge_u32 s{s_w}, 2', f's_cselect_b32 s{s_l0}, 0x7fff0000, s{s_l0}', f's_cselect_b32 s{s_l1}, 0x7fff0000, s{s_l1}']
                L = pre + L
            return L
        elif st < NS:
            L = dma_E(slot_s)
            if st == ND: L = set_E() + L
            return L
        return None
    for st in range(R - 1):
        e(f's_mov_b32 s{s_slD}, {st*SLOT}')
        for x in issue(st, s_slD): e(x)
    for r in range(16): e(f'v_mov_b32 v{acc+r}, 0')
    stamp(e, prof, 1, 2, sTS)
    np_ = 1 if prof else 0
    def reads(st, q):
        E = st >= ND
        base = (st % R) * SLOT + q * 4096
        a, l_ = (rtrE, rlinE) if E else (rtr, rlin)
        return [f'ds_read_b64_tr_b16 v[{TR[q]}:{TR[q]+1}], v{a} offset:{base}',
                f'ds_read_b64_tr_b16 v[{TR[q]+2}:{TR[q]+3}], v{a} offset:{base + 1024}',
                f'ds_read_b128 v[{LN[q]}:{LN[q]+3}], v{l_} offset:{base}']
    assert R * SLOT <= 131072
    hi = {rtr: 56, rtrE: 57, rlin: 58, rlinE: 59}
    for k, v_ in hi.items(): e(f'v_add_u32 v{v_}, 0x10000, v{k}')
    def reads2(st, q):
        out = []
        for x in reads(st, q):
            m = re.search(r', v(\d+) offset:(\d+)', x); a = int(m.group(1)); off = int(m.group(2))
            if off >= 65536: x = x.replace(f', v{a} offset:{off}', f', v{hi[a]} offset:{off - 65536}')
            out.append(x)
        return out
    e(f's_waitcnt vmcnt({4*(R-2) + np_})'); e('s_barrier')
    for q in range(4):
        for x in reads2(0, q): e(x)
    issued = R - 1
    for st in range(NS):
        if st + 1 < NS:
            after = issued - (st + 2)
            e(f's_waitcnt vmcnt({4*after})')
        if st + 1 < NS: e('s_barrier')
        nxt = issue(issued, s_slD) if issued < NS else None
        if nxt:
            e(f's_mov_b32 s{s_slD}, {(issued % R)*SLOT}')
        E = st >= ND
        for q in range(4):
            e(f's_waitcnt lgkmcnt({9 if st + 1 < NS else 9 - 3*q if False else (9 if st + 1 < NS else 3*(3-q))})')
            if E: e(f'v_mfma_f32_32x32x16_bf16 v[{acc}:{acc+15}], v[{LN[q]}:{LN[q]+3}], v[{TR[q]}:{TR[q]+3}], v[{acc}:{acc+15}]')
            else: e(f'v_mfma_f32_32x32x16_bf16 v[{acc}:{acc+15}], v[{TR[q]}:{TR[q]+3}], v[{LN[q]}:{LN[q]+3}], v[{acc}:{acc+15}]')
            if st + 1 < NS:
                for x in reads2(st + 1, q): e(x)
            if nxt:
                n = len(nxt)
                for x in nxt[(n*q)//4:(n*(q+1))//4]: e(x)
        if nxt: issued += 1
    stamp(e, prof, 2, 2, sTS)
    e('s_barrier')
    P = 272
    e(f's_lshl_b32 s{s_t0}, s{s_b}, 5'); e(f'v_add_u32 v{t[0]}, s{s_t0}, v{vA}'); e(f'v_mul_u32_u24 v{t[0]}, {P}, v{t[0]}')
    e(f's_lshl_b32 s{s_t0}, s{s_dt}, 7'); e(f'v_lshl_add_u32 v{t[0]}, v{vH}, 6, v{t[0]}'); e(f'v_add_u32 v{t[0]}, s{s_t0}, v{t[0]}')
    for k in range(4): e(f'ds_write_b128 v{t[0]}, v[{acc+4*k}:{acc+4*k+3}] offset:{16*k}')
    e(f'v_lshrrev_b32 v{t[1]}, 3, v{vL}'); e(f's_lshl_b32 s{s_t0}, s{s_w}, 4'); e(f'v_add_u32 v{t[1]}, s{s_t0}, v{t[1]}'); e(f'v_mul_u32_u24 v{t[1]}, {P}, v{t[1]}')
    e(f'v_and_b32 v{t[2]}, 7, v{vL}'); e(f'v_lshl_add_u32 v{t[1]}, v{t[2]}, 5, v{t[1]}')
    e('s_waitcnt lgkmcnt(0)'); e('s_barrier')
    for i in range(2):
        for k in range(2): e(f'ds_read_b128 v[{24+8*i+4*k}:{24+8*i+4*k+3}], v{t[1]} offset:{i*8*P + 16*k}')
    e('s_waitcnt vmcnt(0) lgkmcnt(0)')
    for i in range(2):
        for k in range(4):
            x = XR[i] + k
            e(f'v_lshlrev_b32 v{t[3]}, 16, v{x}'); e(f'v_and_b32 v{t[4]}, 0xffff0000, v{x}')
            e(f'v_add_f32 v{t[3]}, v{t[3]}, v{24+8*i+2*k}'); e(f'v_add_f32 v{t[4]}, v{t[4]}, v{24+8*i+2*k+1}')
            e(f'v_cvt_pk_bf16_f32 v{x}, v{t[3]}, v{t[4]}')
        e(f'buffer_store_dwordx4 v[{XR[i]}:{XR[i]+3}], v{vO}, s[{sO}:{sO+3}], ' + ('0' if i == 0 else f's{s_8r}') + ' offen')
    if prof:
        e('s_waitcnt vmcnt(0)'); stamp(e, prof, 3, 2, sTS)
    e.label('L3_done'); e('s_endpgm')
    return e.L, R * SLOT

def kernel_text(name, lines, vgpr=256, sgpr=102):
    hdr = [f'.globl {name}', '.p2align 8', f'.type {name},@function', f'{name}:']
    return hdr + fix_hazards(lines)

def kd(name, vgpr=256, sgpr=102):
    return ['.p2align 6', f'.amdhsa_kernel {name}', f'  .amdhsa_next_free_vgpr {vgpr}', f'  .amdhsa_next_free_sgpr {sgpr}',
            f'  .amdhsa_accum_offset {(vgpr+3)//4*4}', '  .amdhsa_group_segment_fixed_size 0', '  .amdhsa_kernarg_size 80',
            '  .amdhsa_user_sgpr_count 2', '  .amdhsa_user_sgpr_kernarg_segment_ptr 1', '  .amdhsa_system_sgpr_workgroup_id_x 1',
            '.end_amdhsa_kernel']

def build(prof=False, which=(1, 2, 3)):
    ks = {1: ('gf_k1_kernel', k1(prof), 256), 2: ('gf_k2_kernel', k2(prof), 257), 3: ('gf_k3_kernel', k3(prof), 256)}
    out = []
    for i in which:
        n, (L, lds), grid = ks[i]
        out.append(f'; @launch kernel={n} grid=({grid},1,1) block=(256,1,1) lds={lds}')
    out += ['.amdgcn_target "amdgcn-amd-amdhsa--gfx950"', '.text']
    for i in which:
        n, (L, lds), grid = ks[i]
        out += kernel_text(n, L)
    out += ['.section .rodata,"a"']
    for i in which: out += kd(ks[i][0])
    return '\n'.join(out) + '\n'

if __name__ == '__main__':
    import sys
    prof = '--prof' in sys.argv
    s = build(prof)
    open(sys.argv[1], 'w').write(s)
    print(len(s), 'bytes')
```

```python
import re

TRANS = ('v_exp_f32', 'v_log_f32', 'v_rcp_f32', 'v_rsq_f32', 'v_sqrt_f32', 'v_sin_f32', 'v_cos_f32')

def vr(a, n=1):
    return f'v{a}' if n == 1 else f'v[{a}:{a+n-1}]'
def sr(a, n=1):
    return f's{a}' if n == 1 else f's[{a}:{a+n-1}]'

_reg_re = re.compile(r'^(-|abs\()?([vas])(\d+)\)?$')
_rng_re = re.compile(r'^(-)?([vas])\[(\d+):(\d+)\]$')

def regs_of(op):
    op = op.strip()
    m = _reg_re.match(op)
    if m: return [(m.group(2), int(m.group(3)))]
    m = _rng_re.match(op)
    if m: return [(m.group(2), i) for i in range(int(m.group(3)), int(m.group(4)) + 1)]
    if op == 'vcc': return [('s', 'vcc')]
    if op == 'exec': return [('s', 'exec')]
    if op == 'm0': return [('s', 'm0')]
    return []

class Ins:
    __slots__ = ('text', 'op', 'ops', 'kind', 'wr', 'rd', 'passes', 'label', 'target', 'nop', 'srcC', 'srcAB', 'dpp', 'lds_dma')
    def __init__(self, text):
        self.text = text
        self.label = None; self.target = None; self.nop = 0; self.passes = 0
        self.wr = []; self.rd = []; self.srcC = []; self.srcAB = []; self.dpp = False; self.lds_dma = False
        t = text.split(';')[0].strip()
        if not t or t.startswith('.'):
            self.kind = 'none'; self.op = ''; self.ops = []; return
        if t.endswith(':'):
            self.kind = 'label'; self.label = t[:-1]; self.op = ''; self.ops = []; return
        parts = t.split(None, 1)
        self.op = op = parts[0]
        rest = parts[1] if len(parts) > 1 else ''
        ops = [o.strip() for o in re.split(r',(?![^\[]*\])', rest)] if rest else []
        if ops:
            last = ops[-1].split()
            ops[-1] = last[0] if last else ''
            mods = last[1:]
        else:
            mods = []
        self.ops = ops
        R = regs_of
        if op == 's_nop':
            self.kind = 'nop'; self.nop = int(ops[0], 0) + 1; return
        if op.startswith('v_mfma'):
            self.kind = 'mfma'
            self.passes = 8 if '32x32' in op else (4 if '16x16' in op else 2)
            self.wr = R(ops[0]); self.srcAB = R(ops[1]) + R(ops[2]); self.srcC = R(ops[3]); self.rd = self.srcAB + self.srcC
            return
        if op.startswith('v_'):
            self.kind = 'valu'
            self.dpp = ('dpp' in op) or any(m.startswith(('row_', 'quad_perm', 'wave_')) for m in mods)
            if op.startswith('v_permlane') and 'swap' in op:
                self.wr = R(ops[0]) + R(ops[1]); self.rd = list(self.wr); return
            if op.startswith('v_swap'):
                self.wr = R(ops[0]) + R(ops[1]); self.rd = list(self.wr); return
            self.wr = R(ops[0])
            start = 1
            if op.startswith(('v_add_co', 'v_addc_co', 'v_sub_co', 'v_subb_co', 'v_subrev_co', 'v_mad_u64', 'v_div_scale')):
                self.wr += R(ops[1]); start = 2
            for o in ops[start:]: self.rd += R(o)
            if op.startswith(('v_fmac', 'v_dot2c', 'v_mac')): self.rd += R(ops[0])
            if op.startswith('v_cmpx'): self.wr += [('s', 'exec')]
            if op.startswith('v_cndmask') and len(ops) == 3: self.rd += [('s', 'vcc')]
            return
        if op.startswith('ds_'):
            self.kind = 'ds'
            if op.startswith(('ds_read', 'ds_bpermute', 'ds_permute', 'ds_swizzle')) or '_rtn' in op:
                self.wr = R(ops[0])
                for o in ops[1:]: self.rd += R(o)
            else:
                for o in ops: self.rd += R(o)
            return
        if op.startswith(('buffer_', 'global_', 'flat_')):
            self.kind = 'vmem'
            allm = ' '.join(mods)
            self.lds_dma = (' lds' in (' ' + allm)) or ('_lds_' in op)
            if op in ('buffer_wbl2', 'buffer_inv'): return
            if 'load' in op and not self.lds_dma:
                self.wr = R(ops[0])
                for o in ops[1:]: self.rd += R(o)
                if 'd16' in op: self.rd += R(ops[0])
            elif 'atomic' in op and 'sc0' in mods:
                self.wr = R(ops[0]) if op.startswith('global') else R(ops[0])
                for o in ops: self.rd += R(o)
            else:
                for o in ops: self.rd += R(o)
            if self.lds_dma: self.rd += [('s', 'm0')]
            return
        if op.startswith('s_'):
            self.kind = 'salu'
            if op.startswith(('s_cbranch', 's_branch')):
                self.kind = 'branch'; self.target = ops[0]; return
            if op in ('s_endpgm', 's_barrier', 's_waitcnt', 's_sleep', 's_setprio', 's_setpc_b64') or op.startswith(('s_cmp', 's_bitcmp')):
                for o in ops: self.rd += R(o)
                return
            if ops: self.wr = R(ops[0])
            for o in ops[1:]: self.rd += R(o)
            if 'saveexec' in op: self.wr += [('s', 'exec')]
            return
        raise ValueError('cannot parse: ' + text)

def _need(p, c):
    n = 0
    pw = set(p.wr)
    isv = lambda r: r[0] in 'va'
    if p.kind == 'valu':
        pwv = {r for r in pw if isv(r)}
        pws = {r for r in pw if r[0] == 's'}
        if c.kind == 'mfma' and pwv & set(c.rd): n = max(n, 2)
        if c.kind == 'valu':
            if p.op in TRANS and c.op not in TRANS and pwv & set(c.rd): n = max(n, 1)
            if p.op in TRANS and c.op in TRANS and pwv & set(c.rd): n = max(n, 1)
            if c.op.startswith(('v_readfirstlane', 'v_readlane')) and pwv & set(c.rd): n = max(n, 1)
            if c.op.startswith('v_permlane') and pwv & set(c.rd): n = max(n, 2)
            if c.dpp and pwv & set(c.rd): n = max(n, 2)
            if pws & set(c.rd):
                n = max(n, 4 if c.op.startswith(('v_readlane', 'v_writelane')) else 2)
            if ('sdwa' in p.op) and pwv & set(c.rd): n = max(n, 1)
        if p.op.startswith('v_dot'):
            if c.kind in ('valu', 'mfma', 'ds', 'vmem'):
                if c.op == p.op:
                    ab = set()
                    for o in c.ops[1:3]: ab |= set(regs_of(o))
                    if pwv & ab: n = max(n, 3)
                elif pwv & (set(c.rd) | set(c.wr)): n = max(n, 3)
        if c.kind == 'vmem' and pws & set(c.rd): n = max(n, 5)
        if c.kind in ('salu', 'branch') and pws & set(c.rd): n = max(n, 4)
        if ('s', 'exec') in pws and c.kind == 'mfma': n = max(n, 4)
        if ('s', 'exec') in pws and c.kind == 'valu' and c.dpp: n = max(n, 5)
    if p.kind == 'mfma':
        D = set(p.wr)
        big = {2: 5, 4: 8, 8: 12}[p.passes]
        if c.kind == 'mfma':
            if D & set(c.srcAB): n = max(n, big)
            if D & set(c.srcC):
                if not (set(c.srcC) == D and c.passes == p.passes):
                    n = max(n, {2: 4, 4: 6, 8: 10}[p.passes])
                elif p.passes == 2: n = max(n, 2)
            if D & set(c.wr) and not (D & set(c.srcC)): n = max(n, big)
        elif c.kind in ('valu', 'ds', 'vmem'):
            if D & (set(c.rd) | set(c.wr)): n = max(n, big)
        if c.kind == 'valu' and set(p.srcC) & set(c.wr): n = max(n, {2: 1, 4: 3, 8: 7}[p.passes])
    if p.kind == 'vmem' and ('store' in p.op or 'atomic' in p.op) and ('x4' in p.op or 'x3' in p.op):
        data = set(regs_of(p.ops[0])) if p.op.startswith('buffer') else set(regs_of(p.ops[1]))
        if c.kind == 'valu' and data & set(c.wr): n = max(n, 2)
        elif c.kind in ('ds', 'vmem', 'mfma') and data & set(c.wr): n = max(n, 1)
    if p.kind == 'salu' and ('s', 'm0') in pw and c.lds_dma: n = max(n, 1)
    return n

MAXW = 13

def fix_hazards(lines, verbose=False):
    for _ in range(50):
        ins = [Ins(l) for l in lines]
        labels = {i.label: k for k, i in enumerate(ins) if i.label}
        real = lambda i: i.kind not in ('none', 'label')
        fixes = {}
        for k, p in enumerate(ins):
            if p.kind not in ('valu', 'mfma', 'vmem', 'salu'): continue
            if p.kind == 'salu' and ('s', 'm0') not in p.wr: continue
            if p.kind == 'vmem' and not ('store' in p.op or 'atomic' in p.op): continue
            stack = [(k + 1, 0)]
            seen = set()
            while stack:
                j, dist = stack.pop()
                while j < len(ins) and dist < MAXW:
                    if (j, dist) in seen: break
                    seen.add((j, dist))
                    c = ins[j]
                    if not real(c): j += 1; continue
                    need = _need(p, c)
                    if need > dist:
                        fixes[j] = max(fixes.get(j, 0), need - dist)
                        break_path = True
                    if c.op == 's_endpgm': break
                    step = c.nop if c.kind == 'nop' else 1
                    if c.kind == 'branch':
                        if c.target in labels: stack.append((labels[c.target], dist + 1))
                        if c.op == 's_branch': break
                    if c.op == 's_setpc_b64': break
                    dist += step; j += 1
        if not fixes: return lines
        out = []
        first = min(fixes)
        applied = 0; last = -100
        for k, l in enumerate(lines):
            if k in fixes and k - last > MAXW:
                n = fixes[k]
                if verbose: print(f'hazard: {n} states before: {l.strip()}')
                while n > 0:
                    m = min(n, 16); out.append(f's_nop {m-1}'); n -= m
                applied += 1; last = k
            out.append(l)
        lines = out
    raise RuntimeError('hazard fixing did not converge')

class Em:
    def __init__(self):
        self.L = []
        self.vm = []
        self.lg = []
    def __call__(self, s, vm=None, lg=None):
        for line in s.split('\n'):
            line = line.strip()
            if line: self.L.append(line)
        if vm is not None: self.vm.append(vm)
        if lg is not None: self.lg.append(lg)
    def wait_vm(self, tag):
        idx = max([i for i, t in enumerate(self.vm) if t == tag], default=-1)
        if idx < 0: return
        n = len(self.vm) - 1 - idx
        self.L.append(f's_waitcnt vmcnt({min(n, 63)})')
        self.vm = self.vm[idx + 1:]
    def wait_lg(self, tag):
        idx = max([i for i, t in enumerate(self.lg) if t == tag], default=-1)
        if idx < 0: return
        n = len(self.lg) - 1 - idx
        self.L.append(f's_waitcnt lgkmcnt({min(n, 15)})')
        self.lg = self.lg[idx + 1:]
    def drain(self, vm=True, lg=True):
        s = []
        if vm: s.append('vmcnt(0)'); self.vm = []
        if lg: s.append('lgkmcnt(0)'); self.lg = []
        self.L.append('s_waitcnt ' + ' '.join(s))
    def label(self, n): self.L.append(n + ':')

def interleave(main, fill):
    out = []
    n = len(main); m = len(fill); k = 0
    for i, x in enumerate(main):
        out.append(x)
        upto = (m * (i + 1)) // n
        while k < upto:
            out.append(fill[k]); k += 1
    return out


def item_cost(it):
    if isinstance(it, str):
        op = it.split()[0]
        if op.endswith(':'): return 0
        if op in TRANS: return 2
        if op.startswith('s_'): return 0.5
        if op.startswith(('buffer_', 'global_')): return 2
        return 1
    k = it[0]
    if k in ('wvm', 'wlg', 'lab'): return 0
    if k == 'vm': return 2
    if k == 'grp': return sum(item_cost(x) for x in it[1])
    return 1

def put(e, it):
    if isinstance(it, str): e(it)
    elif it[0] == 'vm': e(it[1], vm=it[2])
    elif it[0] == 'lg': e(it[1], lg=it[2])
    elif it[0] == 'wvm': e.wait_vm(it[1])
    elif it[0] == 'wlg': e.wait_lg(it[1])
    elif it[0] == 'grp':
        for x in it[1]: put(e, x)
    else: raise ValueError(it)

def spread(items, ngaps, weights=None):
    weights = weights or [1.0] * ngaps
    tot = sum(item_cost(x) for x in items); wsum = sum(weights)
    out = [[] for _ in range(ngaps)]
    g = 0; acc = 0.0; lim = tot * weights[0] / wsum if wsum else 0
    for x in items:
        while g < ngaps - 1 and acc + 0.5 * item_cost(x) > lim + 1e-9:
            g += 1; lim += tot * weights[g] / wsum
        out[g].append(x); acc += item_cost(x)
    return out
```

```python
from asmlib import *

H_OFF, X1_OFF, Y1_OFF, WT_OFF, SM_OFF = 0, 0x600000, 0x800000, 0xA00000, 0xD00000
H_SZ, X1_SZ, Y1_SZ, WT_SZ, SM_SZ = 64*86*1024, 0x200000, 0x200000, 258*8192, 0x200000
ID_O, ST_O, CP_O, FL1_O, FL3_O, TS_O = 0, 0x80000, 0x90000, 0xC0000, 0xD0000, 0x100000
ID_OFF, TS_OFF, ST_OFF = SM_OFF + ID_O, SM_OFF + TS_O, SM_OFF + ST_O
OOB = 0x7fff0000
SPIN, SPIN_MAX = 100, 50000

def srd(e, s, lo, hi, size, add=0):
    if add:
        e(f's_add_u32 s{s}, s{lo}, {add}'); e(f's_addc_u32 s{s+1}, s{hi}, 0')
        e(f's_and_b32 s{s+1}, s{s+1}, 0xffff')
    else:
        e(f's_mov_b32 s{s}, s{lo}'); e(f's_and_b32 s{s+1}, s{hi}, 0xffff')
    e(f's_mov_b32 s{s+2}, {size}'); e(f's_mov_b32 s{s+3}, 0x20000')

def stamp(e, prof, slot, kid, sws, tmp_s=92, tmp_v=252):
    if not prof: return
    e(f's_memrealtime s[{tmp_s}:{tmp_s+1}]')
    e(f's_memtime s[{tmp_s+4}:{tmp_s+5}]')
    e('s_waitcnt lgkmcnt(0)')
    e(f's_lshl_b32 s{tmp_s+2}, s2, 6'); e(f's_add_u32 s{tmp_s+2}, s{tmp_s+2}, {TS_O + kid*32768 + slot*4}')
    e(f'v_mov_b32 v{tmp_v}, s{tmp_s}'); e(f'v_mov_b32 v{tmp_v+1}, s{tmp_s+2}'); e(f'v_mov_b32 v{tmp_v+2}, s{tmp_s+4}')
    e(f'buffer_store_dword v{tmp_v}, v{tmp_v+1}, s[{sws}:{sws+3}], 0 offen')
    e(f'buffer_store_dword v{tmp_v+2}, v{tmp_v+1}, s[{sws}:{sws+3}], 0 offen offset:32')

def nonce_write(e, sDBG, s_w, st, vt, lab):
    e(f's_or_b32 s{st}, s2, s{s_w}'); e(f's_cmp_eq_u32 s{st}, 0'); e(f's_cbranch_scc0 {lab}')
    e(f's_memrealtime s[{st}:{st+1}]'); e('s_waitcnt lgkmcnt(0)'); e(f's_or_b32 s{st}, s{st}, 1')
    e(f'v_mov_b32 v{vt}, s{st}'); e(f'v_mov_b32 v{vt+1}, 0')
    e('s_mov_b64 exec, 1')
    e(f'buffer_store_dword v{vt}, v{vt+1}, s[{sDBG}:{sDBG+3}], 0 offen sc0 sc1')
    e('s_mov_b64 exec, -1')
    e.label(lab)

def nonce_get(e, sDBG, vN, vZ, s_n, lab):
    e(f'v_readfirstlane_b32 s{s_n}, v{vN}'); e(f's_mov_b32 s{SPIN}, 0')
    e.label(lab + '_a')
    e(f's_cmp_lg_u32 s{s_n}, 0'); e(f's_cbranch_scc1 {lab}_b')
    e(f's_add_u32 s{SPIN}, s{SPIN}, 1'); e(f's_cmp_gt_u32 s{SPIN}, {SPIN_MAX}'); e(f's_cbranch_scc1 {lab}_b')
    e(f'buffer_load_dword v{vN}, v{vZ}, s[{sDBG}:{sDBG+3}], 0 offen sc0 sc1'); e('s_waitcnt vmcnt(0)')
    e(f'v_readfirstlane_b32 s{s_n}, v{vN}'); e(f's_branch {lab}_a')
    e.label(lab + '_b')

def code_prefetch(e, start, end, vaddr, vdst, s0, lab):
    e(f's_getpc_b64 s[{s0}:{s0+1}]'); e.label(lab)
    e(f's_add_u32 s{s0}, s{s0}, {start} - {lab}'); e(f's_addc_u32 s{s0+1}, s{s0+1}, 0')
    return

def k1(prof=False, opt=()):
    e = Em()
    SLOT0 = 32768; SLOT_SZ = 16384 + 12320 + 12288; SCR = SLOT0 + 3*SLOT_SZ; SCR2 = SCR + 768
    sX, sWG, sWU, sSM, sWR, sWI, sWT, sDBG = 8, 12, 16, 20, 24, 28, 32, 36
    sH, sX1 = 24, 28
    s_w, s_t, s_g, s_P, s_b, s_rh, s_ch = 40, 41, 42, 43, 44, 45, 46
    s_sx, s_sw, s_slotD, s_slotC, s_d, s_i, s_m0x, s_m0w = 47, 48, 49, 50, 51, 52, 53, 54
    s_t0, s_t1, s_t2, s_t3 = 56, 57, 58, 59
    s_dj = 60
    s_evt, s_n, s_sp, s_id = 64, 65, 66, 67
    s_vg, s_t2x, s_dq = 68, 69, 70
    s_o1, s_o2 = 84, 85
    s_mask = 86
    vL = 1; vxo = [2, 3, 4, 5]; vwo = [6, 7, 8]; vA, vH = 9, 10; vZ = 11
    NM0, R0, NM1, R1 = 12, 13, 14, 15
    xa = [16, 17, 18, 19]; xb = [20, 21, 22, 23]; wa = [24, 25]; da = [26, 27]
    cpl = list(range(28, 44))
    wtraw = list(range(44, 60)); wsp = [60, 61]; vwtx = 62
    X = [[64, 68], [72, 76]]; W = [[80, 84, 88], [92, 96, 100]]; DF = [104, 108]
    idf = 112; vwta = 116; vNon = 117; vFl = 118; vsel = 119
    tmp = list(range(120, 128))
    accM = [[128 + 16*(2*j + i) for i in range(2)] for j in range(3)]; accD = 224
    T = list(range(240, 252))
    t0, t1, t2, t3 = tmp[0:4]; l = vL
    e('s_cmp_ge_u32 s2, 256'); e('s_cbranch_scc1 L1_done')
    e('s_load_dwordx4 s[72:75], s[0:1], 0')
    e('s_load_dwordx4 s[80:83], s[0:1], 32')
    e('s_load_dwordx2 s[76:77], s[0:1], 16')
    e('s_load_dwordx4 s[88:91], s[0:1], 64')
    e(f'v_and_b32 v{vL}, 63, v0'); e(f'v_lshrrev_b32 v{t0}, 6, v0')
    e(f'v_and_b32 v{vA}, 31, v0'); e(f'v_bfe_u32 v{vH}, v0, 5, 1'); e(f'v_mov_b32 v{vZ}, 0')
    e(f'v_readfirstlane_b32 s{s_w}, v{t0}')
    e(f's_and_b32 s{s_t0}, s2, 7'); e(f's_lshr_b32 s{s_t1}, s2, 3')
    e(f's_and_b32 s{s_t}, s{s_t0}, 1'); e(f's_lshl_b32 s{s_t}, s{s_t}, 3'); e(f's_and_b32 s{s_t2}, s{s_t1}, 7'); e(f's_add_u32 s{s_t}, s{s_t}, s{s_t2}')
    e(f's_lshr_b32 s{s_g}, s{s_t0}, 1'); e(f's_lshl_b32 s{s_g}, s{s_g}, 2'); e(f's_lshr_b32 s{s_t2}, s{s_t1}, 3'); e(f's_add_u32 s{s_g}, s{s_g}, s{s_t2}')
    e(f's_mul_i32 s{s_P}, s{s_g}, {8*21846}'); e(f's_lshr_b32 s{s_P}, s{s_P}, 16')
    e(f's_lshl_b32 s{s_b}, s{s_t}, 2'); e(f's_add_u32 s{s_b}, s{s_b}, s{s_w}')
    e(f's_lshr_b32 s{s_rh}, s{s_w}, 1'); e(f's_and_b32 s{s_ch}, s{s_w}, 1')
    e(f's_mov_b32 s{s_mask}, 0xffff0000')
    e(f'v_lshrrev_b32 v{t0}, 3, v{l}'); e(f'v_and_b32 v{t1}, 7, v{l}'); e(f'v_lshrrev_b32 v{t2}, 4, v{l}')
    e(f'v_xor_b32 v{t1}, v{t1}, v{t2}'); e(f'v_lshlrev_b32 v{t0}, 16, v{t0}')
    e(f'v_lshl_add_u32 v{vxo[0]}, v{t1}, 4, v{t0}')
    e(f'v_xor_b32 v{vxo[1]}, 64, v{vxo[0]}'); e(f'v_add_u32 v{vxo[1]}, 0x80000, v{vxo[1]}')
    e(f'v_add_u32 v{vxo[2]}, 0x100000, v{vxo[0]}'); e(f'v_add_u32 v{vxo[3]}, 0x100000, v{vxo[1]}')
    e(f's_mov_b32 s{s_t0}, {(2**32 + 11)//12}'); e(f's_movk_i32 s{s_t1}, 2752')
    for i in range(3):
        e(f'v_add_u32 v{t0}, {64*i}, v{l}'); e(f'v_mul_hi_u32 v{t1}, v{t0}, s{s_t0}')
        e(f'v_mul_u32_u24 v{t2}, 12, v{t1}'); e(f'v_sub_u32 v{t2}, v{t0}, v{t2}')
        e(f'v_mul_u32_u24 v{t1}, s{s_t1}, v{t1}'); e(f'v_lshl_add_u32 v{vwo[i]}, v{t2}, 4, v{t1}')
    vcs = T[0]; vst = T[1]
    e(f'v_lshrrev_b32 v{t0}, 4, v{l}'); e(f'v_mul_u32_u24 v{t0}, {4*2752}, v{t0}'); e(f'v_and_b32 v{t1}, 15, v{l}'); e(f'v_lshl_add_u32 v{vcs}, v{t1}, 4, v{t0}')
    e(f'v_lshlrev_b32 v{vst}, 4, v{l}')
    e(f's_lshl_b32 s{s_t0}, s{s_t}, 5'); e(f's_lshl_b32 s{s_t1}, s{s_ch}, 4'); e(f's_add_u32 s{s_t0}, s{s_t0}, s{s_t1}')
    e(f's_mul_i32 s{s_t0}, s{s_t0}, 2752'); e(f's_lshl_b32 s{s_t1}, s{s_P}, 6'); e(f's_add_u32 s{s_o1}, s{s_t0}, s{s_t1}')
    e(f's_and_b32 s{s_t0}, s{s_g}, 3'); e(f's_lshl_b32 s{s_t0}, s{s_t0}, 3'); e(f's_lshl_b32 s{s_t1}, s{s_w}, 1'); e(f's_add_u32 s{s_t0}, s{s_t0}, s{s_t1}')
    e(f's_lshl_b32 s{s_t0}, s{s_t0}, 6'); e(f's_lshl_b32 s{s_t1}, s{s_t}, 2'); e(f's_add_u32 s{s_t0}, s{s_t0}, s{s_t1}'); e(f's_lshr_b32 s{s_t1}, s{s_g}, 2'); e(f's_add_u32 s{s_t0}, s{s_t0}, s{s_t1}')
    e(f's_lshl_b32 s{s_o2}, s{s_t0}, 10')
    e(f's_lshl_b32 s{s_sx}, s{s_b}, 10')
    e(f's_mul_i32 s{s_sw}, s{s_w}, {16*2752}'); e(f's_lshl_b32 s{s_t0}, s{s_P}, 6'); e(f's_add_u32 s{s_sw}, s{s_sw}, s{s_t0}')
    e(f's_lshl_b32 s{s_m0x}, s{s_w}, 12'); e(f's_mul_i32 s{s_m0w}, s{s_w}, 3072'); e(f's_add_u32 s{s_m0w}, s{s_m0w}, 16384')
    e('s_waitcnt lgkmcnt(0)')
    srd(e, sX, 72, 73, 2048*1024); srd(e, sWG, 80, 81, 512*2752); srd(e, sWU, 82, 83, 512*2752)
    PS = [64, 68]; PC = [72, 76, 80, 84]
    e(f'buffer_load_dwordx4 v[{PS[0]}:{PS[0]+3}], v{vst}, s[{sX}:{sX+3}], s{s_o2} offen', vm='prep')
    e(f's_add_u32 s{s_o2}, s{s_o2}, 65536')
    e(f'buffer_load_dwordx4 v[{PS[1]}:{PS[1]+3}], v{vst}, s[{sX}:{sX+3}], s{s_o2} offen', vm='prep')
    e(f's_cmp_eq_u32 s{s_rh}, 0')
    for k in range(2): e(f's_cselect_b32 s{60+k}, s{sWG+k}, s{sWU+k}')
    e(f's_mov_b32 s62, {512*2752}'); e('s_mov_b32 s63, 0x20000')
    e('s_mov_b32 exec_lo, 0x0fff0fff'); e('s_mov_b32 exec_hi, 0x0fff0fff')
    for r in range(4):
        e(f'buffer_load_dwordx4 v[{PC[r]}:{PC[r]+3}], v{vcs}, s[60:63], s{s_o1} offen', vm='prep')
        if r < 3: e(f's_add_u32 s{s_o1}, s{s_o1}, 2752')
    e('s_mov_b64 exec, -1')
    def dma_list(slot_s, sx, sw):
        out = []
        for i in range(4):
            out.append([f's_add_u32 s{s_t3}, s{slot_s}, s{s_m0x}' if i == 0 else None,
                        f's_add_u32 m0, s{s_t3}, {i*1024}',
                        f'buffer_load_dwordx4 v{vxo[i]}, s[{sX}:{sX+3}], s{sx} offen lds'])
        for mat, sd in ((0, sWG), (1, sWU)):
            for i in range(3):
                out.append([f's_add_u32 s{s_t3}, s{slot_s}, s{s_m0w}' if (i == 0 and mat == 0) else None,
                            f's_add_u32 m0, s{s_t3}, {mat*12320 + i*1024}',
                            f'buffer_load_dwordx4 v{vwo[i]}, s[{sd}:{sd+3}], s{sw} offen lds'])
        return [[x for x in grp if x] for grp in out]
    for st in range(2):
        e(f's_mov_b32 s{s_slotD}, {SLOT0 + st*SLOT_SZ}')
        for grp in dma_list(s_slotD, s_sx, s_sw):
            for x in grp[:-1]: e(x)
            e(grp[-1], vm=('st', st))
        e(f's_add_u32 s{s_sx}, s{s_sx}, 128'); e(f's_add_u32 s{s_sw}, s{s_sw}, {64*2752}')
    srd(e, sWR, 74, 75, 2048*514); srd(e, sWI, 76, 77, 2048*514)
    srd(e, sSM, 90, 91, SM_SZ, SM_OFF); srd(e, sWT, 90, 91, WT_SZ, WT_OFF); srd(e, sDBG, 88, 89, 256)
    stamp(e, prof, 0, 0, sSM)
    nonce_write(e, sDBG, s_w, s_t0, t0, 'L1_non')
    e(f'v_lshlrev_b32 v{t0}, 2, v0'); e(f'v_add_u32 v{t0}, {SCR}, v{t0}'); e(f'ds_write_b32 v{t0}, v{vZ}')
    e(f's_and_b32 s{s_vg}, s2, 7'); e(f's_bfe_u32 s{s_t2x}, s2, 0x10003'); e(f's_lshr_b32 s{s_dq}, s2, 4')
    e(f's_lshl_b32 s{s_t0}, s{s_w}, 3'); e(f's_lshl_b32 s{s_t1}, s{s_t2x}, 2'); e(f's_add_u32 s{s_t0}, s{s_t0}, s{s_t1}')
    e(f's_lshl_b32 s{s_t1}, s{s_dq}, 7'); e(f's_add_u32 s{s_t0}, s{s_t0}, s{s_t1}')
    e(f's_mul_i32 s{s_t0}, s{s_t0}, 514'); e(f's_lshl_b32 s{s_t1}, s{s_vg}, 6'); e(f's_add_u32 s{s_t0}, s{s_t0}, s{s_t1}')
    e(f'v_mul_u32_u24 v{t0}, 1028, v{vH}'); e(f'v_lshl_add_u32 v{t0}, v{vA}, 1, v{t0}'); e(f'v_add_u32 v{t0}, s{s_t0}, v{t0}')
    for dj in range(4): e(f's_mov_b32 s{s_dj+dj}, {dj*16448}')
    for nn in range(2):
        for dj in range(4):
            e(f'buffer_load_ushort v{wtraw[nn*4+dj]}, v{t0}, s[{sWR}:{sWR+3}], s{s_dj+dj} offen offset:{nn*514}', vm='wt')
            e(f'buffer_load_ushort v{wtraw[8+nn*4+dj]}, v{t0}, s[{sWI}:{sWI+3}], s{s_dj+dj} offen offset:{nn*514}', vm='wt')
    e(f's_lshl_b32 s{s_t0}, s{s_vg}, 18'); e(f's_lshl_b32 s{s_t1}, s{s_dq}, 9'); e(f's_add_u32 s{s_t0}, s{s_t0}, s{s_t1}')
    e(f's_lshl_b32 s{s_t1}, s{s_t2x}, 8'); e(f's_add_u32 s{s_t0}, s{s_t0}, s{s_t1}')
    e(f's_lshl_b32 s{s_t1}, s{s_w}, 6'); e(f's_add_u32 s{s_t0}, s{s_t0}, s{s_t1}')
    e(f'v_lshlrev_b32 v{t1}, 13, v{vA}'); e(f'v_lshl_add_u32 v{t1}, v{vH}, 5, v{t1}'); e(f'v_add_u32 v{vwta}, s{s_t0}, v{t1}')
    SP = list(range(28, 36))
    e(f'v_lshlrev_b32 v{vwtx}, 2, v{l}')
    e(f's_cmp_eq_u32 s{s_vg}, 7'); e(f's_cselect_b32 s{s_t0}, 1, 0'); e(f's_cmp_eq_u32 s{s_w}, 0'); e(f's_cselect_b32 s{s_sp}, s{s_t0}, 0')
    e(f's_cmp_eq_u32 s{s_sp}, 1'); e('s_cbranch_scc0 L1_nox')
    e(f'v_lshrrev_b32 v{t0}, 4, v{l}'); e(f'v_lshlrev_b32 v{t0}, 3, v{t0}')
    e(f'v_bfe_u32 v{t1}, v{l}, 2, 2'); e(f'v_add_u32 v{t0}, v{t0}, v{t1}')
    e(f'v_and_b32 v{t1}, 3, v{l}'); e(f'v_lshl_add_u32 v{t0}, v{t1}, 5, v{t0}')
    e(f's_lshl_b32 s{s_t0}, s{s_t2x}, 2'); e(f's_lshl_b32 s{s_t1}, s{s_dq}, 7'); e(f's_add_u32 s{s_t0}, s{s_t0}, s{s_t1}')
    e(f'v_add_u32 v{t0}, s{s_t0}, v{t0}')
    e(f'v_sub_u32 v{t1}, 0x800, v{t0}'); e(f'v_and_b32 v{t1}, 0x7ff, v{t1}')
    e(f'v_mul_u32_u24 v{t0}, 514, v{t0}'); e(f'v_mul_u32_u24 v{t1}, 514, v{t1}')
    for k, (va, off) in enumerate(((t0, 0), (t1, 0), (t0, 512), (t1, 512))):
        e(f'buffer_load_ushort v{SP[2*k]}, v{va}, s[{sWR}:{sWR+3}], 0 offen offset:{off}')
        e(f'buffer_load_ushort v{SP[2*k+1]}, v{va}, s[{sWI}:{sWI+3}], 0 offen offset:{off}')
    e(f's_lshl_b32 s{s_t0}, s{s_dq}, 9'); e(f's_lshl_b32 s{s_t1}, s{s_t2x}, 8'); e(f's_add_u32 s{s_t0}, s{s_t0}, s{s_t1}'); e(f's_add_u32 s{s_t0}, s{s_t0}, {256*8192}')
    e(f'v_add_u32 v{vwtx}, s{s_t0}, v{vwtx}')
    e.label('L1_nox')
    e(f'buffer_load_dword v{vNon}, v{vZ}, s[{sDBG}:{sDBG+3}], 0 offen sc0 sc1', vm='non')
    e(f'v_bfe_u32 v{t0}, v{vA}, 1, 3'); e(f'v_lshlrev_b32 v{t1}, 7, v{vA}')
    e(f's_lshl_b32 s{s_t0}, s{s_w}, 12'); e(f's_add_u32 s{s_t0}, s{s_t0}, {SLOT0}')
    e(f's_xor_b32 s{s_t1}, s{s_w}, 1'); e(f's_lshl_b32 s{s_t1}, s{s_t1}, 12'); e(f's_add_u32 s{s_t1}, s{s_t1}, {SLOT0}')
    for q in range(4):
        e(f's_xor_b32 s{s_t2}, s{s_rh}, {q}'); e(f's_lshl_b32 s{s_t2}, s{s_t2}, 1')
        e(f'v_add_u32 v{t2}, s{s_t2}, v{vH}'); e(f'v_xor_b32 v{t2}, v{t2}, v{t0}'); e(f'v_lshl_add_u32 v{t2}, v{t2}, 4, v{t1}')
        e(f'v_add_u32 v{xa[q]}, s{s_t0}, v{t2}'); e(f'v_add_u32 v{xb[q]}, s{s_t1}, v{t2}')
    e(f'v_bfe_u32 v{t0}, v{l}, 4, 1'); e(f'v_mul_u32_u24 v{t0}, 12320, v{t0}')
    e(f'v_bfe_u32 v{t1}, v{l}, 2, 2'); e(f'v_lshl_add_u32 v{t1}, v{vH}, 3, v{t1}'); e(f'v_mul_u32_u24 v{t1}, 192, v{t1}')
    e(f'v_add_u32 v{t0}, v{t0}, v{t1}'); e(f'v_and_b32 v{t1}, 3, v{l}'); e(f'v_lshl_add_u32 v{t0}, v{t1}, 3, v{t0}')
    e(f's_mul_i32 s{s_t0}, s{s_ch}, 96'); e(f's_add_u32 s{s_t0}, s{s_t0}, {SLOT0 + 16384}'); e(f's_mul_i32 s{s_t1}, s{s_rh}, 3072')
    e(f's_add_u32 s{s_t2}, s{s_t0}, s{s_t1}'); e(f'v_add_u32 v{wa[0]}, s{s_t2}, v{t0}')
    e(f's_sub_u32 s{s_t2}, s{s_t0}, s{s_t1}'); e(f'v_add_u32 v{wa[1]}, s{s_t2}, v{t0}')
    e(f'v_lshlrev_b32 v{t0}, 4, v{l}'); e(f's_lshl_b32 s{s_t1}, s{s_rh}, 10')
    e(f'v_add_u32 v{da[0]}, s{s_t1}, v{t0}'); e(f's_sub_u32 s{s_t1}, 1024, s{s_t1}'); e(f'v_add_u32 v{da[1]}, s{s_t1}, v{t0}')
    stamp(e, prof, 4, 0, sSM)
    vf, ph, ang, f8, c0 = tmp[0], tmp[1], tmp[2], tmp[3], tmp[4]
    e(f'v_lshrrev_b32 v{vf}, 1, v{vA}'); e(f's_lshl_b32 s{s_t0}, s{s_g}, 4'); e(f'v_add_u32 v{vf}, s{s_t0}, v{vf}')
    e(f'v_and_b32 v{ph}, 1, v{vA}')
    e(f'v_cmp_eq_u32 vcc, 0, v{vf}'); e(f'v_cmp_eq_u32 s[{s_t2}:{s_t2+1}], 1, v{ph}'); e(f's_and_b64 vcc, vcc, s[{s_t2}:{s_t2+1}]')
    e(f'v_mov_b32 v{ang}, 0x100'); e(f'v_cndmask_b32 v{vf}, v{vf}, v{ang}, vcc'); e(f'v_cndmask_b32 v{ph}, v{ph}, 0, vcc')
    e(f'v_cvt_f32_u32 v{vf}, v{vf}'); e(f'v_mul_f32 v{vf}, 0x3b000000, v{vf}')
    e(f'v_cvt_f32_u32 v{ph}, v{ph}'); e(f'v_mul_f32 v{ph}, 0x3e800000, v{ph}')
    e(f's_lshl_b32 s{s_t0}, s{s_w}, 7'); e(f'v_lshlrev_b32 v{ang}, 3, v{vH}'); e(f'v_add_u32 v{ang}, s{s_t0}, v{ang}'); e(f'v_cvt_f32_u32 v{ang}, v{ang}')
    e(f'v_fma_f32 v{ang}, v{vf}, v{ang}, v{ph}'); e(f'v_mul_f32 v{f8}, 0x41000000, v{vf}')
    dw = 240
    e(f'v_lshlrev_b32 v{c0}, 4, v{l}'); e(f's_lshl_b32 s{s_t0}, s{s_w}, 13'); e(f'v_add_u32 v{c0}, s{s_t0}, v{c0}')
    e(f's_mov_b32 s{s_i}, 0')
    e.label('L1_dft')
    for jj in range(8):
        e(f'v_cos_f32 v{dw+4+jj}, v{ang}'); e(f'v_add_f32 v{ang}, v{ang}, v{vf}')
    e(f'v_add_f32 v{ang}, v{ang}, v{f8}')
    for k in range(4): e(f'v_cvt_pk_bf16_f32 v{dw+k}, v{dw+4+2*k}, v{dw+5+2*k}')
    e(f'ds_write_b128 v{c0}, v[{dw}:{dw+3}]'); e(f'v_add_u32 v{c0}, 1024, v{c0}')
    e(f's_add_u32 s{s_i}, s{s_i}, 1'); e(f's_cmp_lt_u32 s{s_i}, 8'); e('s_cbranch_scc1 L1_dft')
    e('s_waitcnt lgkmcnt(0)'); e('s_barrier')
    stamp(e, prof, 5, 0, sSM)
    e.wait_vm('prep')
    stamp(e, prof, 6, 0, sSM)
    s_one, s_lo, s_hi = s_t0, s_t1, s_t2
    e(f's_mov_b32 s{s_one}, 0x3f803f80'); e(f's_mov_b32 s{s_lo}, 0x3f80'); e(f's_mov_b32 s{s_hi}, 0x3f800000')
    CA = list(range(88, 96)); SA = [96, 97, 98, 99]
    for r in range(4):
        for d in range(4):
            for hl, ss in ((0, s_lo), (1, s_hi)):
                c = '0' if r == 0 else f'v{CA[2*d+hl]}'
                e(f'v_dot2_f32_bf16 v{CA[2*d+hl]}, v{PC[r]+d}, s{ss}, {c}')
    for k in range(4):
        for rr in range(2):
            c0_ = '0' if k == 0 else f'v{SA[2*rr]}'; c1_ = '0' if k == 0 else f'v{SA[2*rr+1]}'
            e(f'v_dot2_f32_bf16 v{SA[2*rr]}, v{PS[rr]+k}, s{s_one}, {c0_}')
            e(f'v_dot2_f32_bf16 v{SA[2*rr+1]}, v{PS[rr]+k}, v{PS[rr]+k}, {c1_}')
    e(f'v_and_b32 v{t0}, 15, v{l}'); e(f'v_lshlrev_b32 v{t0}, 5, v{t0}'); e(f's_mul_i32 s{s_t3}, s{s_rh}, 384'); e(f's_add_u32 s{s_t3}, s{s_t3}, {SCR}'); e(f'v_add_u32 v{t0}, s{s_t3}, v{t0}')
    e('s_mov_b32 exec_lo, 0x0fff0fff'); e('s_mov_b32 exec_hi, 0x0fff0fff')
    for k in range(8): e(f'ds_add_f32 v{t0}, v{CA[k]} offset:{4*k}')
    e('s_mov_b64 exec, -1')
    for ctl in ('row_shr:1', 'row_shr:2', 'row_shr:4', 'row_shr:8'):
        for k in range(4): e(f'v_add_f32_dpp v{SA[k]}, v{SA[k]}, v{SA[k]} {ctl} row_mask:0xf bank_mask:0xf bound_ctrl:0')
    for k in range(4): e(f'v_add_f32_dpp v{SA[k]}, v{SA[k]}, v{SA[k]} row_bcast:15 row_mask:0xa bank_mask:0xf')
    for k in range(4): e(f'v_add_f32_dpp v{SA[k]}, v{SA[k]}, v{SA[k]} row_bcast:31 row_mask:0xc bank_mask:0xf')
    e(f'v_mov_b32_dpp v{t0}, v{SA[2]} row_shl:1 row_mask:0xf bank_mask:0xf bound_ctrl:0')
    e(f'v_mov_b32_dpp v{t1}, v{SA[3]} row_shl:1 row_mask:0xf bank_mask:0xf bound_ctrl:0')
    e(f'v_cmp_eq_u32 vcc, 62, v{l}')
    sm, sq = SA[0], SA[1]
    e(f'v_cndmask_b32 v{sm}, v{sm}, v{t0}, vcc'); e(f'v_cndmask_b32 v{sq}, v{sq}, v{t1}, vcc')
    a = t0
    e(f'v_mul_f32 v{sm}, 0x3b000000, v{sm}'); e(f'v_mul_f32 v{sq}, 0x3b000000, v{sq}')
    e(f'v_fma_f32 v{sq}, -v{sm}, v{sm}, v{sq}'); e(f'v_max_f32 v{sq}, 0, v{sq}')
    e(f'v_cvt_pk_bf16_f32 v{a}, v{sq}, v{sq}'); e(f'v_and_b32 v{a}, s{s_mask}, v{a}'); e(f'v_add_f32 v{a}, 0x3727c5ac, v{a}')
    e(f'v_cvt_pk_bf16_f32 v{a}, v{a}, v{a}'); e(f'v_and_b32 v{a}, s{s_mask}, v{a}'); e(f'v_sqrt_f32 v{a}, v{a}')
    e(f'v_cvt_pk_bf16_f32 v{a}, v{a}, v{a}'); e(f'v_and_b32 v{a}, s{s_mask}, v{a}')
    e(f'v_rcp_f32 v{SA[3]}, v{a}'); e(f'v_cvt_pk_bf16_f32 v{SA[2]}, -v{sm}, -v{sm}')
    e(f's_lshl_b32 s{s_id}, s{s_t}, 4'); e(f's_add_u32 s{s_id}, s{s_id}, s{s_g}')
    e(f's_lshl_b32 s{s_t3}, s{s_id}, 7'); e(f's_lshl_b32 s{s_t0}, s{s_w}, 4'); e(f's_add_u32 s{s_t3}, s{s_t3}, s{s_t0}'); e(f's_add_u32 s{s_t3}, s{s_t3}, {ST_O}')
    e(f'v_sub_u32 v{t1}, 63, v{l}'); e(f'v_lshlrev_b32 v{t1}, 3, v{t1}')
    e('s_mov_b32 exec_lo, 0'); e('s_mov_b32 exec_hi, 0xc0000000')
    e(f'buffer_store_dwordx2 v[{SA[2]}:{SA[3]}], v{t1}, s[{sSM}:{sSM+3}], s{s_t3} offen sc0 sc1', vm='pst')
    e('s_mov_b64 exec, -1')
    stamp(e, prof, 7, 0, sSM)
    e(f's_cmp_lt_u32 s{s_w}, 2'); e('s_cbranch_scc0 L1_noid')
    s_fi = 71
    e(f's_lshl_b32 s{s_t0}, s2, 1'); e(f's_add_u32 s{s_fi}, s{s_t0}, s{s_w}')
    e(f's_lshr_b32 s{s_t0}, s{s_fi}, 5'); e(f's_and_b32 s{s_t1}, s{s_fi}, 31')
    df, vv, a0 = tmp[0], tmp[1], tmp[2]
    e(f'v_bfe_u32 v{df}, v{vA}, 2, 1'); e(f'v_lshlrev_b32 v{df}, 4, v{df}'); e(f'v_lshrrev_b32 v{vv}, 3, v{vA}'); e(f'v_lshl_add_u32 v{df}, v{vv}, 2, v{df}')
    e(f'v_and_b32 v{vv}, 3, v{vA}'); e(f'v_add_u32 v{df}, v{df}, v{vv}'); e(f's_lshl_b32 s{s_t0}, s{s_t0}, 5'); e(f'v_add_u32 v{df}, s{s_t0}, v{df}')
    e(f'v_and_b32 v{tmp[7]}, 1, v{df}')
    e(f'v_cvt_f32_u32 v{df}, v{df}'); e(f'v_mul_f32 v{df}, 0x3b000000, v{df}')
    e(f's_lshl_b32 s{s_t2}, s{s_t1}, 3'); e(f'v_lshl_add_u32 v{vv}, v{vH}, 1, s{s_t2}'); e(f'v_cvt_f32_u32 v{a0}, v{vv}'); e(f'v_mul_f32 v{a0}, v{a0}, v{df}')
    cw = 244
    for k, dv in enumerate((0, 1, 4, 5)):
        if dv == 0: e(f'v_mov_b32 v{tmp[3]}, v{a0}')
        elif dv == 1: e(f'v_add_f32 v{tmp[3]}, v{a0}, v{df}')
        elif dv == 4: e(f'v_fma_f32 v{tmp[3]}, 4.0, v{df}, v{a0}')
        else: e(f'v_add_f32 v{tmp[3]}, v{tmp[3]}, v{df}')
        e(f'v_cos_f32 v{cw+2*k}, v{tmp[3]}'); e(f'v_sin_f32 v{cw+2*k+1}, v{tmp[3]}')
    for k in range(8): e(f'v_mul_f32 v{cw+k}, 0x36000000, v{cw+k}')
    e(f'v_cmp_eq_u32 vcc, 0, v{vv}')
    e(f'v_mov_b32 v{tmp[4]}, 0x35800000'); e(f'v_lshlrev_b32 v{tmp[7]}, 31, v{tmp[7]}'); e(f'v_xor_b32 v{tmp[5]}, 0xb5800000, v{tmp[7]}')
    e(f'v_cndmask_b32 v{cw}, v{cw}, v{tmp[4]}, vcc'); e(f'v_cndmask_b32 v{cw+1}, v{cw+1}, v{tmp[5]}, vcc')
    for k in range(4): e(f'v_cvt_pk_bf16_f32 v{idf+k}, v{cw+2*k}, v{cw+2*k+1}')
    e.label('L1_noid')
    for r in range(128, 240): e(f'v_mov_b32 v{r}, 0')
    nyoung = len(e.vm) - 1 - max(i for i, tg in enumerate(e.vm) if tg == ('st', 0))
    e(f's_waitcnt vmcnt({nyoung}) lgkmcnt(0)'); e('s_barrier')
    stamp(e, prof, 1, 0, sSM)
    e(f'v_lshlrev_b32 v{t0}, 2, v0'); e(f'v_add_u32 v{t1}, {SCR}, v{t0}'); e(f'ds_read_b32 v{t2}, v{t1}')
    def reads(buf, q):
        L = [f'ds_read_b128 v[{X[buf][0]}:{X[buf][0]+3}], v{xa[q]}']
        for hh in range(2): L.append(f'ds_read_b64_tr_b16 v[{W[buf][0]+2*hh}:{W[buf][0]+2*hh+1}], v{wa[q&1]} offset:{q*3072 + hh*768}')
        L.append(f'ds_read_b128 v[{X[buf][1]}:{X[buf][1]+3}], v{xb[q]}')
        for jj in (1, 2):
            for hh in range(2): L.append(f'ds_read_b64_tr_b16 v[{W[buf][jj]+2*hh}:{W[buf][jj]+2*hh+1}], v{wa[q&1]} offset:{q*3072 + jj*32 + hh*768}')
        L.append(f'ds_read_b128 v[{DF[buf]}:{DF[buf]+3}], v{da[q&1]} offset:{(q & ~1)*1024}')
        return L
    for x in reads(0, 0): e(x)
    e(f's_lshl_b32 s{s_t0}, s{s_g}, 4'); e(f's_add_u32 s{s_t0}, s{s_t0}, s{s_t}'); e(f's_mul_i32 s{s_t0}, s{s_t0}, 768'); e(f's_add_u32 s{s_t0}, s{s_t0}, {CP_O}')
    e(f'v_cmp_gt_u32 vcc, 192, v0'); e(f'v_mov_b32 v{t1}, {OOB}'); e(f'v_cndmask_b32 v{vsel}, v{t1}, v{t0}, vcc')
    e('s_waitcnt lgkmcnt(9)')
    e(f'buffer_store_dword v{t2}, v{vsel}, s[{sSM}:{sSM+3}], s{s_t0} offen sc0 sc1')
    e(f's_mov_b32 s{s_i}, 0'); e(f's_mov_b32 s{s_slotC}, 0'); e(f's_mov_b32 s{s_slotD}, {SLOT0 + 2*SLOT_SZ}'); e(f's_mov_b32 s{s_evt}, 1')
    e(f's_mov_b32 s{s_d}, {SLOT_SZ}'); e(f's_mov_b32 s{s_slotC}, {SLOT_SZ}')
    e(f's_mov_b32 s{s_o1}, s{s_sx}'); e(f's_mov_b32 s{s_o2}, s{s_sw}')
    e.label('L1_loop')
    dmas = dma_list(s_slotD, s_o1, s_o2)
    need = [0, 0, 0, 1, 2, 2, 4, 4, 6]
    def gap_of_read(q, k):
        g = [0, 0, 0, 1, 1, 2, 2, 3, 3][k]
        return g + 1 if q == 3 else g
    for q in range(4):
        buf = q & 1; nb = buf ^ 1; nq = (q + 1) & 3
        mf = []
        for jj in range(3):
            for idx in range(2):
                ac = accM[jj][idx]
                mf.append(f'v_mfma_f32_32x32x16_bf16 v[{ac}:{ac+15}], v[{W[buf][jj]}:{W[buf][jj]+3}], v[{X[buf][idx]}:{X[buf][idx]+3}], v[{ac}:{ac+15}]')
        mf.append(f'v_mfma_f32_32x32x16_bf16 v[{accD}:{accD+15}], v[{DF[buf]}:{DF[buf]+3}], v[{X[buf][0]}:{X[buf][0]+3}], v[{accD}:{accD+15}]')
        rd = reads(nb, nq) if 'noreads' not in opt else []
        gaps = [[] for _ in range(7)]
        if q == 3:
            gaps[0] += (['s_waitcnt vmcnt(10)'] if 'nodma' not in opt else []) + (['s_barrier'] if 'nobar' not in opt else [])
        for k, x in enumerate(rd): gaps[gap_of_read(q, k)].append(x)
        if q < 3 and 'nodma' not in opt:
            lo, hi_ = [(0, 4), (4, 7), (7, 10)][q]
            for k, grp in enumerate(dmas[lo:hi_]): gaps[3 + k if hi_ - lo == 4 else 4 + k] += grp
        upd = {0: [xa[0], xb[0]], 1: [xa[1], xb[1]], 2: [xa[2], xb[2], wa[0]], 3: [xa[3], xb[3], wa[1]]}[q]
        gaps[5] += [f'v_add_u32 v{r}, s{s_d}, v{r}' for r in upd]
        if q == 2: gaps[6].append(f'v_add_u32 v{da[0]}, 0x1000, v{da[0]}')
        if q == 3: gaps[5].append(f'v_add_u32 v{da[1]}, 0x1000, v{da[1]}')
        if q == 0:
            gaps[0] += [f's_cmp_eq_u32 s{s_i}, s{s_evt}', 's_cbranch_scc1 L1_evt', 'L1_evt_ret:'] if 'noevt' not in opt else ['L1_evt_ret:']
        if q == 3:
            gaps[4] += [f's_add_u32 s{s_sx}, s{s_sx}, 128', f's_add_u32 s{s_sw}, s{s_sw}, {64*2752}',
                        f's_add_u32 s{s_slotD}, s{s_slotD}, {SLOT_SZ}', f's_cmp_ge_u32 s{s_slotD}, {SLOT0 + 3*SLOT_SZ}', f's_cselect_b32 s{s_slotD}, {SLOT0}, s{s_slotD}']
            gaps[5] += [f's_cmp_ge_u32 s{s_i}, 5', f's_cselect_b32 s{s_o1}, {OOB}, s{s_sx}', f's_cselect_b32 s{s_o2}, {OOB}, s{s_sw}']
            gaps[6] += [f's_add_u32 s{s_t0}, s{s_slotC}, {SLOT_SZ}', f's_cmp_ge_u32 s{s_t0}, {3*SLOT_SZ}', f's_cselect_b32 s{s_t0}, 0, s{s_t0}',
                        f's_sub_u32 s{s_d}, s{s_t0}, s{s_slotC}', f's_mov_b32 s{s_slotC}, s{s_t0}',
                        f's_add_u32 s{s_i}, s{s_i}, 1', f's_cmp_lt_u32 s{s_i}, 8']
        done = -1
        for i in range(7):
            ks = [k for k in range(9) if need[k] == i]
            if ks and not (q == 3 and False):
                last = max(ks)
                newer = 8 - last + sum(1 for k in range(9) if gap_of_read(q, k) < i)
                if q == 3 and i == 0: newer = 0
                if (not (q == 3 and i > 0 and True) or i == 0) and 'nowait' not in opt: e(f's_waitcnt lgkmcnt({min(newer, 15)})')
            e(mf[i])
            for x in gaps[i]: e(x)
    e('s_cbranch_scc1 L1_loop')
    e('s_waitcnt vmcnt(0) lgkmcnt(0)')
    stamp(e, prof, 2, 0, sSM)
    fl = []
    a, b, c, d = tmp[0:4]
    for k in range(1, 16): e(f'v_add_f32 v{cpl[0]}, v{cpl[0]}, v{cpl[k]}')
    e(f'v_cvt_pk_bf16_f32 v{b}, v{cpl[0]}, v{cpl[0]}'); e(f'v_and_b32 v{b}, s{s_mask}, v{b}'); e(f'v_sub_f32 v{c}, v{cpl[0]}, v{b}')
    e(f'v_cvt_pk_bf16_f32 v{b}, v{b}, v{c}')
    e(f'v_lshlrev_b32 v{a}, 2, v0'); e(f'v_add_u32 v{a}, {SCR2}, v{a}'); e(f'ds_write_b32 v{a}, v{b}')
    e(f'v_bfe_u32 v{c}, v{l}, 4, 1'); e(f'v_mul_u32_u24 v{c}, 384, v{c}'); e(f'v_and_b32 v{d}, 15, v{l}'); e(f'v_lshl_add_u32 v{c}, v{d}, 2, v{c}')
    e(f's_mul_i32 s{s_t0}, s{s_ch}, 192'); e(f's_add_u32 s{s_t0}, s{s_t0}, {SCR2}'); e(f'v_add_u32 v{c}, s{s_t0}, v{c}')
    for k in range(1, 4):
        e(f'v_mov_b32 v{X[0][0]+k}, 0'); e(f'v_mov_b32 v{X[0][1]+k}, 0')
        for jj in range(3): e(f'v_mov_b32 v{W[0][jj]+k}, 0')
        e(f'v_mov_b32 v{DF[1]+k}, 0')
    e(f'v_mov_b32 v{X[0][0]}, v{NM0}'); e(f'v_mov_b32 v{X[0][1]}, v{NM1}')
    e(f's_cmp_eq_u32 s{s_g}, 0'); e(f's_cselect_b32 s{s_t0}, 0x4400, 0'); e(f'v_mov_b32 v{a}, s{s_t0}')
    e(f'v_cmp_eq_u32 vcc, 0, v{l}'); e(f'v_cndmask_b32 v{DF[1]}, 0, v{a}, vcc')
    e('s_waitcnt lgkmcnt(0)'); e('s_barrier')
    for jj in range(3): e(f'ds_read_b32 v{tmp[4+jj]}, v{c} offset:{64*jj}')
    srd(e, sH, 90, 91, H_SZ, H_OFF); srd(e, sX1, 90, 91, X1_SZ, X1_OFF)
    e(f'v_mfma_f32_32x32x16_bf16 v[{accD}:{accD+15}], v[{DF[1]}:{DF[1]+3}], v[{X[0][0]}:{X[0][0]+3}], v[{accD}:{accD+15}]')
    e(f'v_cmp_gt_u32 vcc, 32, v{l}')
    e('s_waitcnt lgkmcnt(0)')
    for jj in range(3): e(f'v_cndmask_b32 v{W[0][jj]}, 0, v{tmp[4+jj]}, vcc')
    for jj in range(3):
        for idx in range(2):
            ac = accM[jj][idx]
            e(f'v_mfma_f32_32x32x16_bf16 v[{ac}:{ac+15}], v[{W[0][jj]}:{W[0][jj]+3}], v[{X[0][idx]}:{X[0][idx]+3}], v[{ac}:{ac+15}]')
    e(f'v_lshlrev_b32 v{vxo[0]}, 4, v{l}')
    e(f'v_lshlrev_b32 v{vxo[1]}, 2, v{vA}'); e(f'v_lshl_add_u32 v{vxo[1]}, v{vH}, 14, v{vxo[1]}')
    e(f's_lshl_b32 s{s_t0}, s{s_g}, 17'); e(f's_lshl_b32 s{s_t1}, s{s_b}, 7'); e(f's_add_u32 s{s_t0}, s{s_t0}, s{s_t1}')
    for q in range(4):
        for ip in range(2):
            j = 4*q + 2*ip
            e(f'v_mul_f32 v{accD+j}, v{R0}, v{accD+j}'); e(f'v_mul_f32 v{accD+j+1}, v{R0}, v{accD+j+1}')
            e(f'v_cvt_pk_bf16_f32 v{accD+j}, v{accD+j}, v{accD+j+1}')
            e(f's_add_u32 s{s_t1}, s{s_t0}, {(4*q+ip)*8192}')
            e(f'buffer_store_dword v{accD+j}, v{vxo[1]}, s[{sX1}:{sX1+3}], s{s_t1} offen')
    e(f's_lshl_b32 s{s_t0}, s{s_P}, 1'); e(f's_mul_i32 s{s_t1}, s{s_ch}, 3'); e(f's_add_u32 s{s_t0}, s{s_t0}, s{s_t1}')
    e(f's_mul_i32 s{s_t1}, s{s_b}, 86'); e(f's_add_u32 s{s_t1}, s{s_t1}, s{s_t0}'); e(f's_lshl_b32 s{s_t1}, s{s_t1}, 10')
    e(f's_xor_b32 s{s_t2}, s{s_b}, 1'); e(f's_mul_i32 s{s_t2}, s{s_t2}, 86'); e(f's_add_u32 s{s_t2}, s{s_t2}, s{s_t0}'); e(f's_lshl_b32 s{s_t2}, s{s_t2}, 10')
    for jj in range(3):
        for idx in range(2):
            ac = accM[jj][idx]; o = (W[1][jj] if idx == 0 else X[1][0] + 0) if True else 0
            o = [W[1][0], W[1][1], W[1][2], X[1][0], X[1][1], DF[0]][2*jj + idx]
            for j in range(8):
                e(f'v_max_f32 v{ac+j}, 0, v{ac+j}'); e(f'v_mul_f32 v{ac+j}, v{ac+j}, v{ac+8+j}')
            for k in range(4): e(f'v_cvt_pk_bf16_f32 v{o+k}, v{ac+2*k}, v{ac+2*k+1}')
            e(f'buffer_store_dwordx4 v[{o}:{o+3}], v{vxo[0]}, s[{sH}:{sH+3}], s{s_t1 if idx == 0 else s_t2} offen offset:{jj*1024}')
    for nn in range(2):
        for dj in range(4):
            e(f'v_lshl_or_b32 v{wtraw[nn*4+dj]}, v{wtraw[8+nn*4+dj]}, 16, v{wtraw[nn*4+dj]}')
        e(f'buffer_store_dwordx4 v[{wtraw[nn*4]}:{wtraw[nn*4]+3}], v{vwta}, s[{sWT}:{sWT+3}], 0 offen offset:{nn*16}')
    e(f's_cmp_eq_u32 s{s_sp}, 1'); e('s_cbranch_scc0 L1_nox2')
    e(f'buffer_store_dword v{wsp[1]}, v{vwtx}, s[{sWT}:{sWT+3}], 0 offen')
    e(f's_movk_i32 s{s_t0}, 8192')
    e(f'buffer_store_dword v{wsp[0]}, v{vwtx}, s[{sWT}:{sWT+3}], s{s_t0} offen')
    e.label('L1_nox2')
    e(f's_cmp_lt_u32 s{s_w}, 2'); e('s_cbranch_scc0 L1_noid2')
    e(f's_lshl_b32 s{s_t0}, s{s_fi}, 10')
    e(f'buffer_store_dwordx4 v[{idf}:{idf+3}], v{vxo[0]}, s[{sSM}:{sSM+3}], s{s_t0} offen')
    e.label('L1_noid2')
    if prof:
        e('s_waitcnt vmcnt(0)'); stamp(e, prof, 3, 0, sSM)
    e.label('L1_done'); e('s_endpgm')
    e.label('L1_evt')
    e(f's_cmp_eq_u32 s{s_i}, 1'); e('s_cbranch_scc1 L1_e1')
    e(f's_cmp_eq_u32 s{s_i}, 4'); e('s_cbranch_scc1 L1_e4')
    e(f's_cmp_eq_u32 s{s_i}, 5'); e('s_cbranch_scc1 L1_e5')
    e(f's_mov_b32 s{s_evt}, 99')
    u0, u1 = T[0], T[1]
    for idx, (dst, flip) in enumerate(((NM0, 0), (NM1, 1))):
        e(f's_xor_b32 s{s_t0}, s{s_w}, {flip}'); e(f's_lshl_b32 s{s_t0}, s{s_t0}, 2'); e(f's_lshl_b32 s{s_t2}, s{s_t}, 4'); e(f's_add_u32 s{s_t0}, s{s_t0}, s{s_t2}')
        e(f's_lshl_b32 s{s_t0}, s{s_t0}, 7'); e(f's_add_u32 s{s_t0}, s{s_t0}, {ST_O}')
        e(f'v_lshrrev_b32 v{u0}, 3, v{vA}'); e(f'v_lshlrev_b32 v{u0}, 7, v{u0}'); e(f'v_and_b32 v{u1}, 7, v{vA}'); e(f'v_lshl_add_u32 v{u0}, v{u1}, 3, v{u0}')
        e(f'buffer_load_dwordx2 v[{dst}:{dst+1}], v{u0}, s[{sSM}:{sSM+3}], s{s_t0} offen sc0 sc1')
    e(f's_mul_i32 s{s_t0}, s{s_g}, {16*768}'); e(f's_add_u32 s{s_t0}, s{s_t0}, {CP_O}')
    for k in range(16):
        if k and k % 5 == 0: e(f's_add_u32 s{s_t0}, s{s_t0}, {5*768}')
        e(f'buffer_load_dword v{cpl[k]}, v{vsel}, s[{sSM}:{sSM+3}], s{s_t0} offen offset:{(k % 5)*768} sc0 sc1')
    e('s_branch L1_evt_ret')
    e.label('L1_e1')
    e(f's_mov_b32 s{s_evt}, 4')
    e(f's_cmp_eq_u32 s{s_sp}, 1'); e('s_cbranch_scc0 L1_e1b')
    for k in range(8): e(f'v_lshlrev_b32 v{SP[k]}, 16, v{SP[k]}')
    ar, ai, cr, ci, er, ei, fr, fi = SP
    e(f'v_add_f32 v{ar}, v{ar}, v{cr}'); e(f'v_sub_f32 v{ai}, v{ai}, v{ci}'); e(f'v_add_f32 v{er}, v{er}, v{fr}'); e(f'v_sub_f32 v{ei}, v{ei}, v{fi}')
    e(f'v_add_f32 v{cr}, v{ar}, v{er}'); e(f'v_add_f32 v{ci}, v{ai}, v{ei}'); e(f'v_sub_f32 v{fr}, v{ar}, v{er}'); e(f'v_sub_f32 v{fi}, v{ai}, v{ei}')
    for r in (cr, ci, fr, fi): e(f'v_mul_f32 v{r}, 0x3e800000, v{r}')
    e(f'v_cvt_pk_bf16_f32 v{wsp[0]}, v{cr}, v{ci}'); e(f'v_cvt_pk_bf16_f32 v{wsp[1]}, v{fr}, v{fi}')
    e.label('L1_e1b')
    e(f's_cmp_eq_u32 s{s_w}, 0'); e('s_cbranch_scc0 L1_evt_ret')
    nonce_get(e, sDBG, vNon, vZ, s_n, 'L1_ng')
    e(f's_lshl_b32 s{s_t0}, s{s_id}, 7'); e(f's_add_u32 s{s_t0}, s{s_t0}, {FL1_O}')
    e(f'v_mov_b32 v{u0}, s{s_n}')
    e('s_mov_b64 exec, 1')
    e(f'buffer_store_dword v{u0}, v{vZ}, s[{sSM}:{sSM+3}], s{s_t0} offen sc0 sc1')
    e('s_mov_b64 exec, -1')
    e('s_branch L1_evt_ret')
    e.label('L1_e4')
    e(f's_mov_b32 s{s_evt}, 5')
    e(f's_cmp_eq_u32 s{s_w}, 0'); e('s_cbranch_scc0 L1_evt_ret')
    e(f'v_and_b32 v{u0}, 15, v{l}'); e(f's_lshl_b32 s{s_t0}, s{s_t}, 4'); e(f'v_add_u32 v{u1}, s{s_t0}, v{u0}')
    e(f'v_lshlrev_b32 v{u0}, 4, v{u0}'); e(f'v_add_u32 v{u0}, s{s_g}, v{u0}')
    e(f'v_bfe_u32 v{T[2]}, v{l}, 4, 1'); e(f'v_cmp_eq_u32 vcc, 0, v{T[2]}'); e(f'v_cndmask_b32 v{u0}, v{u0}, v{u1}, vcc')
    e(f'v_lshlrev_b32 v{T[3]}, 7, v{u0}'); e(f'v_add_u32 v{T[3]}, {FL1_O}, v{T[3]}')
    e(f'buffer_load_dword v{vFl}, v{T[3]}, s[{sSM}:{sSM+3}], 0 offen sc0 sc1')
    e('s_branch L1_evt_ret')
    e.label('L1_e5')
    e(f's_mov_b32 s{s_evt}, 6')
    e(f's_cmp_eq_u32 s{s_w}, 0'); e('s_cbranch_scc0 L1_evt_ret')
    e(f's_mov_b32 s{SPIN}, 0')
    e.label('L1_e5a')
    e(f'v_cmp_ne_u32 vcc, s{s_n}, v{vFl}'); e('s_cmp_eq_u64 vcc, 0'); e('s_cbranch_scc1 L1_evt_ret')
    e(f's_add_u32 s{SPIN}, s{SPIN}, 1'); e(f's_cmp_gt_u32 s{SPIN}, {SPIN_MAX}'); e('s_cbranch_scc1 L1_evt_ret')
    e(f'buffer_load_dword v{vFl}, v{T[3]}, s[{sSM}:{sSM+3}], 0 offen sc0 sc1'); e('s_waitcnt vmcnt(0)')
    e('s_branch L1_e5a')
    return e.L, SCR2 + 1024

def k2(prof=False, R=7, opt=()):
    e = Em()
    SLOT = 16384
    EX1 = R*SLOT; EX2 = EX1 + 8192; MIR = EX2 + 8192; LDS_SZ = MIR + 32*528
    sWD, sH, sY1, sSM, sX, sO, sX1, sWT, sDBG = 8, 12, 16, 20, 24, 28, 32, 36, 40
    s_w, s_bp, s_ct, s_dt, s_b, s_n = 44, 45, 46, 47, 48, 49
    s_t0, s_t1, s_t2, s_t3 = 52, 53, 54, 55
    s_slD, s_tr, s_l0, s_l1, s_m0, s_8r, s_mask = 56, 57, 58, 59, 60, 61, 62
    vL, vN, vG = 1, 2, 3
    t = list(range(4, 16))
    DA = [16, 20]; WW = [24, 28]
    G = lambda ri, to, ti: 32 + 16*ri + 8*to + 4*ti
    H = lambda ri, kk: 64 + 16*ri + 4*kk
    TWF, TWI = 96, 112
    AC = lambda ri, tt: 128 + 8*ri + 4*tt
    EX = [144, 148]
    BF = lambda kk, tt: 152 + 8*kk + 4*tt
    WU = 184
    WM = [200, 204]
    vtrD, vtrE, vlin, rtr, rlin, rtrE, rlinE = 208, 209, 210, 211, 212, 213, 214
    hi = {rtr: 215, rlin: 216, rtrE: 217, rlinE: 218}
    vO, vR2, vNon, vZ, vA, vH = 219, 220, 221, 222, 223, 224
    XR = [228, 232]
    vFa = 236; FL = [237, 238, 239, 240]
    TR = [24 + 8*q for q in range(4)]; LN = [28 + 8*q for q in range(4)]
    acc = 64
    e('s_cmp_ge_u32 s2, 256'); e('s_cbranch_scc1 L2_done')
    e('s_load_dwordx4 s[64:67], s[0:1], 64')
    e('s_load_dwordx4 s[68:71], s[0:1], 48')
    e('s_load_dwordx2 s[72:73], s[0:1], 0')
    e(f'v_and_b32 v{vL}, 63, v0'); e(f'v_lshrrev_b32 v{t[0]}, 6, v0'); e(f'v_and_b32 v{vN}, 15, v0'); e(f'v_bfe_u32 v{vG}, v0, 4, 2')
    e(f'v_and_b32 v{vA}, 31, v0'); e(f'v_bfe_u32 v{vH}, v0, 5, 1'); e(f'v_mov_b32 v{vZ}, 0')
    e(f'v_readfirstlane_b32 s{s_w}, v{t[0]}')
    e(f's_and_b32 s{s_t0}, s2, 7'); e(f's_lshr_b32 s{s_t1}, s2, 3')
    e(f's_lshl_b32 s{s_bp}, s{s_t0}, 2'); e(f's_and_b32 s{s_t2}, s{s_t1}, 3'); e(f's_add_u32 s{s_bp}, s{s_bp}, s{s_t2}'); e(f's_lshr_b32 s{s_ct}, s{s_t1}, 2')
    e(f's_lshr_b32 s{s_dt}, s{s_w}, 1'); e(f's_and_b32 s{s_b}, s{s_w}, 1'); e(f's_mov_b32 s{s_mask}, 0xffff0000')
    e(f'v_lshlrev_b32 v{t[0]}, 7, v{vN}'); e(f'v_lshl_add_u32 v{t[0]}, v{vG}, 5, v{t[0]}')
    e(f'v_lshlrev_b32 v{t[1]}, 4, v{vN}'); e(f'v_lshl_add_u32 v{t[1]}, v{vG}, 9, v{t[1]}')
    e(f'v_lshrrev_b32 v{t[2]}, 3, v{vL}'); e(f'v_and_b32 v{t[3]}, 7, v{vL}'); e(f'v_bfe_u32 v{t[4]}, v{vL}, 4, 1'); e(f'v_lshlrev_b32 v{t[4]}, 2, v{t[4]}')
    e(f'v_xor_b32 v{t[3]}, v{t[3]}, v{t[4]}'); e(f'v_lshlrev_b32 v{t[3]}, 4, v{t[3]}')
    e(f'v_lshl_add_u32 v{vtrD}, v{t[2]}, 10, v{t[3]}'); e(f'v_lshl_add_u32 v{vtrE}, v{t[2]}, 12, v{t[3]}')
    e(f'v_lshlrev_b32 v{vlin}, 4, v{vL}'); e(f'v_lshlrev_b32 v{vFa}, 6, v{vL}')
    e(f's_lshl_b32 s{s_tr}, s{s_w}, 14'); e(f's_lshl_b32 s{s_t0}, s{s_ct}, 7'); e(f's_add_u32 s{s_tr}, s{s_tr}, s{s_t0}')
    e(f's_mul_i32 s{s_l0}, s{s_bp}, {2*86}'); e(f's_add_u32 s{s_l0}, s{s_l0}, s{s_w}'); e(f's_lshl_b32 s{s_l0}, s{s_l0}, 10'); e(f's_add_u32 s{s_l1}, s{s_l0}, {86*1024}')
    e(f's_lshl_b32 s{s_m0}, s{s_w}, 12')
    e(f's_lshl_b32 s{s_t1}, s{s_w}, 11'); e(f's_lshl_b32 s{s_t0}, s2, 13'); e(f's_add_u32 s{s_t0}, s{s_t0}, s{s_t1}')
    e('s_waitcnt lgkmcnt(0)')
    srd(e, sX1, 66, 67, X1_SZ, X1_OFF); srd(e, sWT, 66, 67, WT_SZ, WT_OFF)
    for ti in range(2): e(f'buffer_load_dwordx4 v[{DA[ti]}:{DA[ti]+3}], v{t[0]}, s[{sX1}:{sX1+3}], s{s_t0} offen offset:{16*ti}', vm='da')
    e(f's_cmp_eq_u32 s2, 0'); e(f's_cselect_b32 s{s_t2}, {257*8192}, 0'); e(f's_add_u32 s{s_t2}, s{s_t2}, s{s_t0}')
    for tt in range(2): e(f'buffer_load_dwordx4 v[{WW[tt]}:{WW[tt]+3}], v{t[1]}, s[{sWT}:{sWT+3}], s{s_t2} offen offset:{256*tt}', vm='ww')
    e(f's_cmp_eq_u32 s2, 0'); e('s_cbranch_scc0 L2_nsp0')
    e(f's_add_u32 s{s_t2}, s{s_t1}, {256*8192}')
    for tt in range(2): e(f'buffer_load_dwordx4 v[{WM[tt]}:{WM[tt]+3}], v{t[1]}, s[{sWT}:{sWT+3}], s{s_t2} offen offset:{256*tt}')
    e.label('L2_nsp0')
    srd(e, sWD, 68, 69, 1376*1024); srd(e, sH, 66, 67, H_SZ, H_OFF); srd(e, sY1, 66, 67, Y1_SZ, Y1_OFF); srd(e, sSM, 66, 67, SM_SZ, SM_OFF)
    def dma(slot_s, E):
        sd_tr, vtr, step2, sd_l, adv = (sY1, vtrE, 32768, sSM, 262144) if E else (sWD, vtrD, 8192, sH, 65536)
        return [(f's_add_u32 s{s_t3}, s{slot_s}, s{s_m0}', 0),
                (f's_mov_b32 m0, s{s_t3}', 0), (f'buffer_load_dwordx4 v{vtr}, s[{sd_tr}:{sd_tr+3}], s{s_tr} offen lds', 1),
                (f's_add_u32 m0, s{s_t3}, 1024', 0), (f's_add_u32 s{s_t2}, s{s_tr}, {step2}', 0), (f'buffer_load_dwordx4 v{vtr}, s[{sd_tr}:{sd_tr+3}], s{s_t2} offen lds', 1),
                (f's_add_u32 m0, s{s_t3}, 2048', 0), (f'buffer_load_dwordx4 v{vlin}, s[{sd_l}:{sd_l+3}], s{s_l0} offen lds', 1),
                (f's_add_u32 m0, s{s_t3}, 3072', 0), (f'buffer_load_dwordx4 v{vlin}, s[{sd_l}:{sd_l+3}], s{s_l1} offen lds', 1),
                (f's_add_u32 s{s_tr}, s{s_tr}, {adv}', 0), (f's_add_u32 s{s_l0}, s{s_l0}, 4096', 0), (f's_add_u32 s{s_l1}, s{s_l1}, 4096', 0)]
    ND, NE = 22, 8; NS = ND + NE
    def issue(st):
        if st >= NS: return None
        L = [(f's_mov_b32 s{s_slD}, {(st % R)*SLOT}', 0)]
        if st == ND - 1:
            L += [(f's_cmp_ge_u32 s{s_w}, 2', 0), (f's_cselect_b32 s{s_l0}, {OOB}, s{s_l0}', 0), (f's_cselect_b32 s{s_l1}, {OOB}, s{s_l1}', 0)]
        if st == ND:
            L += [(x, 0) for x in (f's_lshl_b32 s{s_tr}, s{s_w}, 16', f's_lshl_b32 s{s_t0}, s{s_bp}, 7', f's_add_u32 s{s_tr}, s{s_tr}, s{s_t0}',
                  f's_lshl_b32 s{s_l0}, s{s_ct}, 6', f's_add_u32 s{s_l0}, s{s_l0}, s{s_w}', f's_lshl_b32 s{s_l0}, s{s_l0}, 10', f's_add_u32 s{s_l0}, s{s_l0}, {ID_O}', f's_add_u32 s{s_l1}, s{s_l0}, 32768')]
        return L + dma(s_slD, st >= ND)
    def emit_issue(L, st):
        for x, isv in L: e(x, vm=(('st', st) if isv else None))
    for st in range(R - 1): emit_issue(issue(st), st)
    srd(e, sDBG, 64, 65, 256); srd(e, sO, 70, 71, 2048*1024); srd(e, sX, 72, 73, 2048*1024)
    stamp(e, prof, 0, 1, sSM)
    nonce_write(e, sDBG, s_w, s_t0, t[2], 'L2_non')
    e(f'v_lshrrev_b32 v{t[2]}, 3, v{vL}'); e(f's_lshl_b32 s{s_t0}, s{s_w}, 4'); e(f'v_add_u32 v{t[2]}, s{s_t0}, v{t[2]}')
    e(f'v_and_b32 v{t[3]}, 31, v{t[2]}'); e(f'v_lshrrev_b32 v{t[4]}, 5, v{t[2]}')
    e(f'v_lshlrev_b32 v{t[3]}, 16, v{t[3]}'); e(f'v_lshl_add_u32 v{t[3]}, v{t[4]}, 10, v{t[3]}')
    e(f'v_and_b32 v{t[4]}, 7, v{vL}'); e(f'v_lshl_add_u32 v{t[3]}, v{t[4]}, 4, v{t[3]}')
    e(f's_lshl_b32 s{s_t0}, s{s_bp}, 11'); e(f's_lshl_b32 s{s_t1}, s{s_ct}, 7'); e(f's_add_u32 s{s_t0}, s{s_t0}, s{s_t1}')
    e(f'v_add_u32 v{vO}, s{s_t0}, v{t[3]}'); e(f's_mov_b32 s{s_8r}, {8*65536}')
    e(f'buffer_load_dwordx4 v[{XR[0]}:{XR[0]+3}], v{vO}, s[{sX}:{sX+3}], 0 offen', vm='xr')
    e(f'buffer_load_dwordx4 v[{XR[1]}:{XR[1]+3}], v{vO}, s[{sX}:{sX+3}], s{s_8r} offen', vm='xr')
    e(f's_lshl_b32 s{s_t0}, s{s_bp}, 1'); e(f's_add_u32 s{s_t0}, s{s_t0}, s{s_b}'); e(f's_and_b32 s{s_t1}, s{s_t0}, 3'); e(f's_lshr_b32 s{s_t0}, s{s_t0}, 2')
    e(f's_lshl_b32 s{s_t0}, s{s_t0}, 4'); e(f's_lshl_b32 s{s_t1}, s{s_t1}, 2'); e(f's_add_u32 s{s_t0}, s{s_t0}, s{s_t1}'); e(f's_lshl_b32 s{s_t0}, s{s_t0}, 7'); e(f's_add_u32 s{s_t0}, s{s_t0}, {ST_O + 4}')
    e(f'v_lshrrev_b32 v{t[2]}, 3, v{vA}'); e(f'v_lshlrev_b32 v{t[2]}, 7, v{t[2]}'); e(f'v_and_b32 v{t[3]}, 7, v{vA}'); e(f'v_lshl_add_u32 v{t[2]}, v{t[3]}, 3, v{t[2]}')
    e(f'buffer_load_dword v{vR2}, v{t[2]}, s[{sSM}:{sSM+3}], s{s_t0} offen', vm='xr')
    e(f'buffer_load_dword v{vNon}, v{vZ}, s[{sDBG}:{sDBG+3}], 0 offen sc0 sc1', vm='xr')
    e(f'v_bfe_u32 v{t[2]}, v{vL}, 2, 2'); e(f'v_lshl_add_u32 v{t[3]}, v{vH}, 2, v{t[2]}'); e(f'v_lshlrev_b32 v{t[3]}, 7, v{t[3]}')
    e(f'v_bfe_u32 v{t[4]}, v{vL}, 3, 1'); e(f'v_bfe_u32 v{t[5]}, v{vL}, 4, 1'); e(f'v_and_b32 v{t[6]}, 3, v{vL}')
    e(f'v_xor_b32 v{t[7]}, s{s_dt}, v{t[4]}'); e(f'v_lshl_add_u32 v{t[7]}, v{t[7]}, 6, v{t[3]}')
    e(f'v_and_b32 v{t[8]}, 1, v{t[6]}'); e(f'v_lshlrev_b32 v{t[8]}, 5, v{t[8]}'); e(f'v_lshl_add_u32 v{t[8]}, v{t[5]}, 4, v{t[8]}')
    e(f'v_lshrrev_b32 v{t[9]}, 1, v{t[6]}'); e(f'v_lshl_add_u32 v{t[8]}, v{t[9]}, 3, v{t[8]}'); e(f'v_add_u32 v{rtr}, v{t[7]}, v{t[8]}')
    e(f'v_xor_b32 v{t[7]}, s{s_b}, v{t[4]}'); e(f'v_lshl_add_u32 v{t[7]}, v{t[7]}, 6, v{t[3]}')
    e(f'v_lshlrev_b32 v{t[8]}, 5, v{t[5]}'); e(f'v_lshl_add_u32 v{t[8]}, v{t[6]}, 3, v{t[8]}'); e(f'v_add_u32 v{rtrE}, v{t[7]}, v{t[8]}')
    e(f's_lshl_b32 s{s_t0}, s{s_b}, 10'); e(f's_add_u32 s{s_t0}, s{s_t0}, 2048'); e(f'v_add_u32 v{rlin}, s{s_t0}, v{vlin}')
    e(f's_lshl_b32 s{s_t0}, s{s_dt}, 10'); e(f's_add_u32 s{s_t0}, s{s_t0}, 2048'); e(f'v_add_u32 v{rlinE}, s{s_t0}, v{vlin}')
    for k, v_ in hi.items(): e(f'v_add_u32 v{v_}, 0x10000, v{k}')
    def cs_pair(ang, re_, im_):
        e(f'v_cos_f32 v{t[8]}, v{ang}'); e(f'v_sin_f32 v{t[9]}, v{ang}')
        e(f'v_cvt_pk_bf16_f32 v{re_}, v{t[8]}, v{t[9]}'); e(f'v_cvt_pk_bf16_f32 v{im_}, -v{t[9]}, v{t[8]}')
    ob, of, an, g8 = t[2], t[3], t[4], t[5]
    e(f'v_lshrrev_b32 v{ob}, 2, v{vN}'); e(f'v_lshlrev_b32 v{ob}, 3, v{ob}'); e(f'v_and_b32 v{an}, 3, v{vN}'); e(f'v_add_u32 v{ob}, v{ob}, v{an}')
    e(f'v_lshlrev_b32 v{g8}, 3, v{vG}'); e(f'v_cvt_f32_u32 v{g8}, v{g8}')
    PI0 = t[10]; vPI = 226
    e(f'v_mov_b32 v{vPI}, v{ob}')
    e(f'v_cvt_f32_u32 v{PI0}, v{ob}')
    for to in range(2):
        if to == 0: e(f'v_mul_f32 v{of}, 0x3d000000, v{PI0}')
        else: e(f'v_add_f32 v{of}, 4.0, v{PI0}'); e(f'v_mul_f32 v{of}, 0x3d000000, v{of}')
        e(f'v_mul_f32 v{an}, v{of}, v{g8}')
        for k in range(8):
            cs_pair(an, G(0, to, k >> 2) + (k & 3), G(1, to, k >> 2) + (k & 3))
            if k < 7: e(f'v_add_f32 v{an}, v{an}, v{of}')
    OUTF = t[11]; G4 = t[7]
    e(f's_lshl_b32 s{s_t0}, s{s_w}, 4'); e(f'v_add_u32 v{ob}, s{s_t0}, v{vN}'); e(f'v_cvt_f32_u32 v{OUTF}, v{ob}')
    e(f'v_mul_f32 v{of}, 0x3c800000, v{OUTF}'); e(f'v_mul_f32 v{G4}, 0.5, v{g8}'); e(f'v_mul_f32 v{an}, v{G4}, v{of}'); e(f'v_mul_f32 v{t[6]}, 0x41400000, v{of}')
    for kk in range(4):
        for i in range(4):
            cs_pair(an, H(0, kk) + i, H(1, kk) + i)
            e(f'v_add_f32 v{an}, v{an}, v{of}')
        if kk < 3: e(f'v_add_f32 v{an}, v{an}, v{t[6]}')
    e(f's_lshl_b32 s{s_t0}, s{s_w}, 4'); e(f'v_cvt_f32_u32 v{an}, s{s_t0}'); e(f'v_add_f32 v{t[6]}, v{an}, v{G4}')
    for tt in range(2):
        if tt == 0: e(f'v_mul_f32 v{of}, 0x3a000000, v{PI0}')
        else: e(f'v_add_f32 v{of}, 4.0, v{PI0}'); e(f'v_mul_f32 v{of}, 0x3a000000, v{of}')
        e(f'v_mul_f32 v{an}, v{of}, v{t[6]}')
        for j in range(4):
            e(f'v_cos_f32 v{TWF+4*tt+j}, v{an}'); e(f'v_sin_f32 v{TWF+8+4*tt+j}, v{an}')
            if j < 3: e(f'v_add_f32 v{an}, v{an}, v{of}')
    e(f'v_mul_f32 v{of}, 0x3a000000, v{OUTF}'); e(f'v_mul_f32 v{an}, v{of}, v{g8}')
    for k in range(8):
        e(f'v_cos_f32 v{TWI+k}, v{an}'); e(f'v_sin_f32 v{TWI+8+k}, v{an}')
        if k < 7: e(f'v_add_f32 v{an}, v{an}, v{of}')
    vEW, vER, vY = t[0], t[1], t[2]
    e(f'v_lshlrev_b32 v{vER}, 4, v{vL}'); e(f'v_add_u32 v{vER}, {EX1}, v{vER}'); e(f's_lshl_b32 s{s_t0}, s{s_w}, 11'); e(f'v_add_u32 v{vEW}, s{s_t0}, v{vER}')
    e(f'v_lshlrev_b32 v{vY}, 6, v{vN}'); e(f'v_lshl_add_u32 v{vY}, v{vG}, 4, v{vY}'); e(f's_lshl_b32 s{s_t0}, s{s_w}, 10'); e(f'v_add_u32 v{vY}, s{s_t0}, v{vY}')
    e.wait_vm('da')
    stamp(e, prof, 1, 1, sSM)
    def mf(d, a, b, first): e(f'v_mfma_f32_16x16x32_bf16 v[{d}:{d+3}], v[{a}:{a+3}], v[{b}:{b+3}], ' + ('0' if first else f'v[{d}:{d+3}]'))
    for ti in range(2):
        for ri in range(2):
            for to in range(2): mf(AC(ri, to), DA[ti], G(ri, to, ti), ti == 0)
    def twiddle(TW):
        for tt in range(2):
            for j in range(4):
                r, i, c, s = AC(0, tt) + j, AC(1, tt) + j, TW + 4*tt + j, TW + 8 + 4*tt + j
                a_, b_ = t[8 + 2*(j & 1)], t[9 + 2*(j & 1)]
                e(f'v_mul_f32 v{a_}, v{r}, v{c}'); e(f'v_mul_f32 v{b_}, v{i}, v{c}')
                e(f'v_fma_f32 v{a_}, v{i}, v{s}, v{a_}'); e(f'v_fma_f32 v{b_}, -v{r}, v{s}, v{b_}')
                e(f'v_cvt_pk_bf16_f32 v{EX[tt]+j}, v{a_}, v{b_}')
    def exchange(off):
        for tt in range(2): e(f'ds_write_b128 v{vEW}, v[{EX[tt]}:{EX[tt]+3}] offset:{off + 1024*tt}')
        e('s_waitcnt lgkmcnt(0)'); e('s_barrier')
        for kk in range(4):
            for tt in range(2): e(f'ds_read_b128 v[{BF(kk,tt)}:{BF(kk,tt)+3}], v{vER} offset:{off + 2048*kk + 1024*tt}', lg=('bf', kk))
    twiddle(TWF)
    exchange(0)
    e.wait_vm('ww')
    for tt in range(2):
        for j in range(4):
            e(f'v_lshlrev_b32 v{WU+4*tt+j}, 16, v{WW[tt]+j}'); e(f'v_and_b32 v{WU+8+4*tt+j}, s{s_mask}, v{WW[tt]+j}')
    for kk in range(4):
        e.wait_lg(('bf', kk))
        for ri in range(2):
            for tt in range(2): mf(AC(ri, tt), H(ri, kk), BF(kk, tt), kk == 0)
    e('s_cmp_eq_u32 s2, 0'); e('s_cbranch_scc1 L2_special')
    for tt in range(2):
        for j in range(4):
            r, i, wr, wi = AC(0, tt) + j, AC(1, tt) + j, WU + 4*tt + j, WU + 8 + 4*tt + j
            a_, b_ = t[8 + 2*(j & 1)], t[9 + 2*(j & 1)]
            e(f'v_mul_f32 v{a_}, v{r}, v{wr}'); e(f'v_mul_f32 v{b_}, -v{r}, v{wi}')
            e(f'v_fma_f32 v{a_}, -v{i}, v{wi}, v{a_}'); e(f'v_fma_f32 v{b_}, -v{i}, v{wr}, v{b_}')
            e(f'v_cvt_pk_bf16_f32 v{EX[tt]+j}, v{a_}, v{b_}')
    e.label('L2_spret')
    exchange(8192)
    for kk in range(4):
        e.wait_lg(('bf', kk))
        for ri in range(2):
            for tt in range(2): mf(AC(ri, tt), BF(kk, tt), H(ri, kk), kk == 0)
    twiddle(TWI)
    for ti in range(2):
        for ri in range(2):
            for to in range(2): mf(AC(ri, to), G(ri, to, ti), EX[ti], ti == 0)
    e(f's_lshl_b32 s{s_t0}, s2, 13'); e(f's_add_u32 s{s_t1}, s{s_t0}, 4096')
    for ri in range(2):
        o = BF(ri, 0)
        e(f'v_cvt_pk_bf16_f32 v{o}, v{AC(ri,0)}, v{AC(ri,0)+1}'); e(f'v_cvt_pk_bf16_f32 v{o+1}, v{AC(ri,0)+2}, v{AC(ri,0)+3}')
        e(f'v_cvt_pk_bf16_f32 v{o+2}, v{AC(ri,1)}, v{AC(ri,1)+1}'); e(f'v_cvt_pk_bf16_f32 v{o+3}, v{AC(ri,1)+2}, v{AC(ri,1)+3}')
        e(f'buffer_store_dwordx4 v[{o}:{o+3}], v{vY}, s[{sY1}:{sY1+3}], s{s_t0 if ri == 0 else s_t1} offen sc0 sc1', vm='y1')
    stamp(e, prof, 2, 1, sSM)
    for r in range(16): e(f'v_mov_b32 v{acc+r}, 0')
    def reads(st, q):
        E = st >= ND
        base = (st % R) * SLOT + q * 4096
        a, l_ = (rtrE, rlinE) if E else (rtr, rlin)
        out = []
        for x, areg, off in ((f'ds_read_b64_tr_b16 v[{TR[q]}:{TR[q]+1}]', a, base), (f'ds_read_b64_tr_b16 v[{TR[q]+2}:{TR[q]+3}]', a, base + 1024), (f'ds_read_b128 v[{LN[q]}:{LN[q]+3}]', l_, base)):
            if off >= 65536: areg, off = hi[areg], off - 65536
            out.append(f'{x}, v{areg} offset:{off}')
        return out
    ST_PUB, ST_FL, ST_CHK = 3, ND - R - 2, ND - R
    e.wait_vm(('st', 0)); e('s_barrier')
    for q in range(4):
        for x in reads(0, q): e(x)
    issued = R - 1
    for st in range(NS):
        if st + 1 < NS:
            e.wait_vm(('st', st + 1))
            if st == ST_PUB: e.wait_vm('y1')
            if st == ST_CHK:
                e(f's_cmp_eq_u32 s{s_w}, 0'); e('s_cbranch_scc0 L2_chk_done')
                e(f's_waitcnt vmcnt({4*(ST_CHK - ST_FL)})'); e(f's_mov_b32 s{SPIN}, 0')
                e.label('L2_chk')
                e(f'v_cmp_ne_u32 vcc, s{s_n}, v{FL[0]}');
                for k in range(1, 4):
                    e(f'v_cmp_ne_u32 s[{s_t0+0}:{s_t0+1}], s{s_n}, v{FL[k]}'); e(f's_or_b64 vcc, vcc, s[{s_t0}:{s_t0+1}]')
                e('s_cmp_eq_u64 vcc, 0'); e('s_cbranch_scc1 L2_chk_done')
                e(f's_add_u32 s{SPIN}, s{SPIN}, 1'); e(f's_cmp_gt_u32 s{SPIN}, {SPIN_MAX}'); e('s_cbranch_scc1 L2_chk_done')
                for k in range(4): e(f'buffer_load_dword v{FL[k]}, v{vFa}, s[{sSM}:{sSM+3}], s{76+k} offen sc0 sc1')
                e('s_waitcnt vmcnt(0)'); e('s_branch L2_chk')
                e.label('L2_chk_done')
            e('s_barrier')
            if st == ST_PUB:
                e(f's_cmp_eq_u32 s{s_w}, 0'); e('s_cbranch_scc0 L2_pub_done')
                nonce_get(e, sDBG, vNon, vZ, s_n, 'L2_ng')
                e(f's_lshl_b32 s{s_t0}, s2, 6'); e(f's_add_u32 s{s_t0}, s{s_t0}, {FL3_O}'); e(f'v_mov_b32 v{t[0]}, s{s_n}')
                e('s_mov_b64 exec, 1')
                e(f'buffer_store_dword v{t[0]}, v{vZ}, s[{sSM}:{sSM+3}], s{s_t0} offen sc0 sc1')
                e('s_mov_b64 exec, -1')
                e.label('L2_pub_done')
            if st == ST_FL:
                e(f's_cmp_eq_u32 s{s_w}, 0'); e('s_cbranch_scc0 L2_fl_done')
                for k in range(4): e(f's_mov_b32 s{76+k}, {FL3_O + k*4096}')
                for k in range(4): e(f'buffer_load_dword v{FL[k]}, v{vFa}, s[{sSM}:{sSM+3}], s{76+k} offen sc0 sc1')
                e.label('L2_fl_done')
        nxt = issue(issued)
        E = st >= ND
        if st == ND:
            e(f'v_mul_f32 v{vR2}, v{vR2}, v{vR2}')
            for r in range(16): e(f'v_mul_f32 v{acc+r}, v{vR2}, v{acc+r}')
        for q in range(4):
            e(f's_waitcnt lgkmcnt({9 if st + 1 < NS else 3*(3-q)})')
            A_, B_ = (LN[q], TR[q]) if E else (TR[q], LN[q])
            e(f'v_mfma_f32_32x32x16_bf16 v[{acc}:{acc+15}], v[{A_}:{A_+3}], v[{B_}:{B_+3}], v[{acc}:{acc+15}]')
            if st + 1 < NS:
                for x in reads(st + 1, q): e(x)
            if nxt:
                n = len(nxt)
                emit_issue(nxt[(n*q)//4:(n*(q+1))//4], issued)
        if nxt: issued += 1
    stamp(e, prof, 3, 1, sSM)
    e('s_barrier')
    P = 272
    e(f's_lshl_b32 s{s_t0}, s{s_b}, 5'); e(f'v_add_u32 v{t[0]}, s{s_t0}, v{vA}'); e(f'v_mul_u32_u24 v{t[0]}, {P}, v{t[0]}')
    e(f's_lshl_b32 s{s_t0}, s{s_dt}, 7'); e(f'v_lshl_add_u32 v{t[0]}, v{vH}, 6, v{t[0]}'); e(f'v_add_u32 v{t[0]}, s{s_t0}, v{t[0]}')
    for k in range(4): e(f'ds_write_b128 v{t[0]}, v[{acc+4*k}:{acc+4*k+3}] offset:{16*k}')
    e(f'v_lshrrev_b32 v{t[1]}, 3, v{vL}'); e(f's_lshl_b32 s{s_t0}, s{s_w}, 4'); e(f'v_add_u32 v{t[1]}, s{s_t0}, v{t[1]}'); e(f'v_mul_u32_u24 v{t[1]}, {P}, v{t[1]}')
    e(f'v_and_b32 v{t[2]}, 7, v{vL}'); e(f'v_lshl_add_u32 v{t[1]}, v{t[2]}, 5, v{t[1]}')
    e('s_waitcnt lgkmcnt(0)'); e('s_barrier')
    for i in range(2):
        for k in range(2): e(f'ds_read_b128 v[{24+8*i+4*k}:{24+8*i+4*k+3}], v{t[1]} offset:{i*8*P + 16*k}')
    e('s_waitcnt vmcnt(0) lgkmcnt(0)')
    for i in range(2):
        for k in range(4):
            x = XR[i] + k
            e(f'v_lshlrev_b32 v{t[3]}, 16, v{x}'); e(f'v_and_b32 v{t[4]}, s{s_mask}, v{x}')
            e(f'v_add_f32 v{t[3]}, v{t[3]}, v{24+8*i+2*k}'); e(f'v_add_f32 v{t[4]}, v{t[4]}, v{24+8*i+2*k+1}')
            e(f'v_cvt_pk_bf16_f32 v{x}, v{t[3]}, v{t[4]}')
        e(f'buffer_store_dwordx4 v[{XR[i]}:{XR[i]+3}], v{vO}, s[{sO}:{sO+3}], ' + ('0' if i == 0 else f's{s_8r}') + ' offen')
    if prof:
        e('s_waitcnt vmcnt(0)'); stamp(e, prof, 4, 1, sSM)
    e.label('L2_done'); e('s_endpgm')
    e.label('L2_special')
    m0_, m1_, m2_, m3_ = t[3], t[4], t[5], t[6]
    e(f'v_lshlrev_b32 v{m0_}, 2, v{vG}'); e(f's_lshl_b32 s{s_t0}, s{s_w}, 4'); e(f'v_add_u32 v{m0_}, s{s_t0}, v{m0_}')
    for tt in range(2):
        e(f'v_add_u32 v{m1_}, {4*tt}, v{vPI}'); e(f'v_mul_u32_u24 v{m1_}, 528, v{m1_}'); e(f'v_lshl_add_u32 v{m1_}, v{m0_}, 3, v{m1_}'); e(f'v_add_u32 v{m1_}, {MIR}, v{m1_}')
        for j in range(4): e(f'ds_write2_b32 v{m1_}, v{AC(0,tt)+j}, v{AC(1,tt)+j} offset0:{2*j} offset1:{2*j+1}')
    e(f's_cmp_eq_u32 s{s_w}, 0'); e('s_cbranch_scc0 L2_sp1')
    e(f'v_mov_b32 v{m1_}, {MIR + 64*8}'); e('s_mov_b64 exec, 1')
    e(f'ds_write2_b32 v{m1_}, v{AC(0,0)}, v{AC(1,0)} offset0:0 offset1:1'); e('s_mov_b64 exec, -1')
    e.label('L2_sp1')
    e('s_waitcnt lgkmcnt(0)'); e('s_barrier')
    ZM = [BF(0, 0), BF(1, 0)]
    for tt in range(2):
        e(f'v_add_u32 v{m1_}, {4*tt}, v{vPI}')
        e(f'v_sub_u32 v{m2_}, 32, v{m1_}'); e(f'v_and_b32 v{m2_}, 31, v{m2_}'); e(f'v_mul_u32_u24 v{m2_}, 528, v{m2_}')
        e(f'v_cmp_eq_u32 vcc, 0, v{m1_}'); e(f'v_mov_b32 v{m3_}, 60'); e(f'v_cndmask_b32 v{m3_}, v{m3_}, 61, vcc')
        e(f'v_sub_u32 v{m3_}, v{m3_}, v{m0_}'); e(f'v_lshl_add_u32 v{m2_}, v{m3_}, 3, v{m2_}'); e(f'v_add_u32 v{m2_}, {MIR}, v{m2_}')
        for j in range(4): e(f'ds_read_b64 v[{ZM[tt]+2*j}:{ZM[tt]+2*j+1}], v{m2_} offset:{(3-j)*8}')
    e('s_waitcnt lgkmcnt(0)')
    for tt in range(2):
        for j in range(4):
            zr, zi, pr, pi_ = AC(0, tt) + j, AC(1, tt) + j, WU + 4*tt + j, WU + 8 + 4*tt + j
            ur, ui = ZM[tt] + 2*j, ZM[tt] + 2*j + 1
            mr, mi, a_, b_ = t[6], t[7], t[8], t[9]
            e(f'v_lshlrev_b32 v{mr}, 16, v{WM[tt]+j}'); e(f'v_and_b32 v{mi}, s{s_mask}, v{WM[tt]+j}')
            e(f'v_mul_f32 v{a_}, v{zr}, v{pr}'); e(f'v_fma_f32 v{a_}, -v{zi}, v{pi_}, v{a_}'); e(f'v_fma_f32 v{a_}, v{ur}, v{mr}, v{a_}'); e(f'v_fma_f32 v{a_}, v{ui}, v{mi}, v{a_}')
            e(f'v_mul_f32 v{b_}, -v{zr}, v{pi_}'); e(f'v_fma_f32 v{b_}, -v{zi}, v{pr}, v{b_}'); e(f'v_fma_f32 v{b_}, -v{ur}, v{mi}, v{b_}'); e(f'v_fma_f32 v{b_}, v{ui}, v{mr}, v{b_}')
            e(f'v_cvt_pk_bf16_f32 v{EX[tt]+j}, v{a_}, v{b_}')
    e('s_branch L2_spret')
    return e.L, LDS_SZ

def kernel_text(name, lines):
    hdr = [f'.globl {name}', '.p2align 8', f'.type {name},@function', f'{name}:']
    return hdr + fix_hazards(lines)

def kd(name, vgpr=256, sgpr=102):
    return ['.p2align 6', f'.amdhsa_kernel {name}', f'  .amdhsa_next_free_vgpr {vgpr}', f'  .amdhsa_next_free_sgpr {sgpr}',
            f'  .amdhsa_accum_offset {(vgpr+3)//4*4}', '  .amdhsa_group_segment_fixed_size 0', '  .amdhsa_kernarg_size 80',
            '  .amdhsa_user_sgpr_count 2', '  .amdhsa_user_sgpr_kernarg_segment_ptr 1', '  .amdhsa_system_sgpr_workgroup_id_x 1',
            '.end_amdhsa_kernel']

def build(prof=False, which=(1, 2), opt=()):
    ks = {1: ('gf_k1_kernel', k1(prof, opt), 256), 2: ('gf_k2_kernel', k2(prof, opt=opt), 256)}
    out = []
    for i in which:
        n, (L, lds), grid = ks[i]
        out.append(f'; @launch kernel={n} grid=({grid},1,1) block=(256,1,1) lds={lds}')
    out += ['.amdgcn_target "amdgcn-amd-amdhsa--gfx950"', '.text']
    for i in which:
        n, (L, lds), grid = ks[i]
        out += kernel_text(n, L)
    out += ['.section .rodata,"a"']
    for i in which: out += kd(ks[i][0])
    return '\n'.join(out) + '\n'

if __name__ == '__main__':
    import sys
    prof = '--prof' in sys.argv
    s = build(prof)
    open(sys.argv[1], 'w').write(s)
    print(len(s), 'bytes')
```

```python
from asmlib import *
import gen2
from gen2 import (H_OFF, X1_OFF, Y1_OFF, WT_OFF, SM_OFF, H_SZ, X1_SZ, Y1_SZ, WT_SZ, SM_SZ, ID_O, ST_O, CP_O, FL1_O, FL3_O, TS_O,
                  ID_OFF, TS_OFF, ST_OFF, OOB, SPIN, SPIN_MAX, srd, stamp, kd)

TS_OFF = TS_OFF
def prefetch_code(e, lab_from, nbytes, s0, vtmp, vdst, s_w, uid):
    L = [f's_getpc_b64 s[{s0}:{s0+1}]', f'{uid}:', f's_add_u32 s{s0}, s{s0}, {lab_from} - {uid}', f's_addc_u32 s{s0+1}, s{s0+1}, 0',
         f'v_lshlrev_b32 v{vtmp}, 7, v0', f'v_cmp_gt_u32 vcc, {nbytes}, v{vtmp}', f'v_cndmask_b32 v{vtmp}, 0, v{vtmp}, vcc',
         f'global_load_dword v{vdst}, v{vtmp}, s[{s0}:{s0+1}]']
    return L

def k1(prof=False, opt=()):
    e = Em()
    XS, WS0, WSZ = 16384, 49152, 24608
    DF0 = WS0 + 3*WSZ
    SCR = DF0 + 3*4096; SCR2 = SCR + 1536
    LDS = SCR2 + 1024
    sX, sWG, sWU, sSM, sWR, sWI, sWT, sDBG = 8, 12, 16, 20, 24, 28, 32, 36
    sH, sX1 = 24, 28
    s_w, s_t, s_g, s_P, s_b, s_rh, s_ch = 40, 41, 42, 43, 44, 45, 46
    s_sx, s_sw, s_ox, s_ow, s_m0x, s_m0w = 47, 48, 49, 50, 51, 52
    s_t0, s_t1, s_t2, s_t3 = 56, 57, 58, 59
    s_dj = 60
    s_n, s_sp, s_id, s_fi = 64, 65, 66, 67
    s_vg, s_t2x, s_dq = 68, 69, 70
    s_mask = 71
    s_u0, s_u1, s_u2 = 84, 85, 86
    sWD = 72
    vL = 1; vxo = [2, 3, 4, 5]; vwo = [6, 7, 8]; vA, vH, vZ = 9, 10, 11
    NM0, R0, NM1, R1 = 12, 13, 14, 15
    xa = [16, 17, 18, 19]; xb = [20, 21, 22, 23]; wa, da, vDW, vsel = 24, 25, 26, 27
    cpl = list(range(28, 44)); SP = cpl[:8]
    wtraw = list(range(44, 60)); wsp = [60, 61]; vwtx, vwta = 62, 63
    X = [[64, 68], [72, 76]]; W = [[80, 84, 88], [92, 96, 100]]; DF = [104, 108]
    idf = 112; vNon, vFl, vFa, vf, ang, f56 = 116, 117, 118, 119, 120, 121
    tmp = list(range(122, 128))
    accM = [[128 + 16*(2*j + i) for i in range(2)] for j in range(3)]; accD = 224
    T = list(range(240, 256))
    t0, t1, t2, t3 = tmp[0:4]; l = vL
    e('s_cmp_ge_u32 s2, 256'); e('s_cbranch_scc1 L1_done')
    e('s_load_dwordx4 s[72:75], s[0:1], 0')
    e('s_load_dwordx4 s[80:83], s[0:1], 32')
    e('s_load_dwordx4 s[88:91], s[0:1], 64')
    e('s_load_dwordx2 s[76:77], s[0:1], 16')
    e('s_load_dwordx2 s[78:79], s[0:1], 48')
    e(f'v_and_b32 v{vL}, 63, v0'); e(f'v_lshrrev_b32 v{t0}, 6, v0')
    e(f'v_and_b32 v{vA}, 31, v0'); e(f'v_bfe_u32 v{vH}, v0, 5, 1'); e(f'v_mov_b32 v{vZ}, 0')
    e(f'v_readfirstlane_b32 s{s_w}, v{t0}')
    e(f's_and_b32 s{s_t0}, s2, 7'); e(f's_lshr_b32 s{s_t1}, s2, 3')
    e(f's_and_b32 s{s_t}, s{s_t0}, 1'); e(f's_lshl_b32 s{s_t}, s{s_t}, 3'); e(f's_and_b32 s{s_t2}, s{s_t1}, 7'); e(f's_add_u32 s{s_t}, s{s_t}, s{s_t2}')
    e(f's_lshr_b32 s{s_g}, s{s_t0}, 1'); e(f's_lshl_b32 s{s_g}, s{s_g}, 2'); e(f's_lshr_b32 s{s_t2}, s{s_t1}, 3'); e(f's_add_u32 s{s_g}, s{s_g}, s{s_t2}')
    e(f's_mul_i32 s{s_P}, s{s_g}, {8*21846}'); e(f's_lshr_b32 s{s_P}, s{s_P}, 16')
    e(f's_lshl_b32 s{s_b}, s{s_t}, 2'); e(f's_add_u32 s{s_b}, s{s_b}, s{s_w}')
    e(f's_lshr_b32 s{s_rh}, s{s_w}, 1'); e(f's_and_b32 s{s_ch}, s{s_w}, 1')
    vcs, vst = T[0], T[1]
    e(f'v_lshrrev_b32 v{t0}, 4, v{l}'); e(f'v_mul_u32_u24 v{t0}, {4*2752}, v{t0}'); e(f'v_and_b32 v{t1}, 15, v{l}'); e(f'v_lshl_add_u32 v{vcs}, v{t1}, 4, v{t0}')
    e(f'v_lshlrev_b32 v{vst}, 4, v{l}')
    e(f's_lshl_b32 s{s_t0}, s{s_t}, 5'); e(f's_lshl_b32 s{s_t1}, s{s_ch}, 4'); e(f's_add_u32 s{s_t0}, s{s_t0}, s{s_t1}')
    e(f's_mul_i32 s{s_t0}, s{s_t0}, 2752'); e(f's_lshl_b32 s{s_t1}, s{s_P}, 6'); e(f's_add_u32 s{s_u0}, s{s_t0}, s{s_t1}')
    e(f's_and_b32 s{s_t0}, s{s_g}, 3'); e(f's_lshl_b32 s{s_t0}, s{s_t0}, 3'); e(f's_lshl_b32 s{s_t1}, s{s_w}, 1'); e(f's_add_u32 s{s_t0}, s{s_t0}, s{s_t1}')
    e(f's_lshl_b32 s{s_t0}, s{s_t0}, 6'); e(f's_lshl_b32 s{s_t1}, s{s_t}, 2'); e(f's_add_u32 s{s_t0}, s{s_t0}, s{s_t1}'); e(f's_lshr_b32 s{s_t1}, s{s_g}, 2'); e(f's_add_u32 s{s_t0}, s{s_t0}, s{s_t1}')
    e(f's_lshl_b32 s{s_u1}, s{s_t0}, 10')
    e(f'v_lshrrev_b32 v{t0}, 3, v{l}'); e(f'v_and_b32 v{t1}, 7, v{l}'); e(f'v_lshrrev_b32 v{t2}, 4, v{l}')
    e(f'v_xor_b32 v{t1}, v{t1}, v{t2}'); e(f'v_lshlrev_b32 v{t0}, 16, v{t0}')
    e(f'v_lshl_add_u32 v{vxo[0]}, v{t1}, 4, v{t0}')
    e(f'v_xor_b32 v{vxo[1]}, 64, v{vxo[0]}'); e(f'v_add_u32 v{vxo[1]}, 0x80000, v{vxo[1]}')
    e(f'v_add_u32 v{vxo[2]}, 0x100000, v{vxo[0]}'); e(f'v_add_u32 v{vxo[3]}, 0x100000, v{vxo[1]}')
    e(f's_mov_b32 s{s_t0}, {(2**32 + 11)//12}'); e(f's_movk_i32 s{s_t1}, 2752')
    for i in range(3):
        e(f'v_add_u32 v{t0}, {64*i}, v{l}'); e(f'v_mul_hi_u32 v{t1}, v{t0}, s{s_t0}')
        e(f'v_mul_u32_u24 v{t2}, 12, v{t1}'); e(f'v_sub_u32 v{t2}, v{t0}, v{t2}')
        e(f'v_mul_u32_u24 v{t1}, s{s_t1}, v{t1}'); e(f'v_lshl_add_u32 v{vwo[i]}, v{t2}, 4, v{t1}')
    e(f's_lshl_b32 s{s_sx}, s{s_b}, 10')
    e(f's_mul_i32 s{s_sw}, s{s_w}, {16*2752}'); e(f's_lshl_b32 s{s_t0}, s{s_P}, 6'); e(f's_add_u32 s{s_sw}, s{s_sw}, s{s_t0}')
    e(f's_lshl_b32 s{s_m0x}, s{s_w}, 12'); e(f's_mul_i32 s{s_m0w}, s{s_w}, 3072'); e(f's_add_u32 s{s_m0w}, s{s_m0w}, {WS0}')
    e(f's_mov_b32 s{s_mask}, 0xffff0000')
    e('s_waitcnt lgkmcnt(0)')
    srd(e, sX, 72, 73, 2048*1024); srd(e, sWG, 80, 81, 512*2752); srd(e, sWU, 82, 83, 512*2752)
    PS = [64, 68]; PC = [72, 76, 80, 84]
    e(f'buffer_load_dwordx4 v[{PS[0]}:{PS[0]+3}], v{vst}, s[{sX}:{sX+3}], s{s_u1} offen', vm='prep')
    e(f's_add_u32 s{s_u1}, s{s_u1}, 65536')
    e(f'buffer_load_dwordx4 v[{PS[1]}:{PS[1]+3}], v{vst}, s[{sX}:{sX+3}], s{s_u1} offen', vm='prep')
    e(f's_cmp_eq_u32 s{s_rh}, 0')
    for k in range(2): e(f's_cselect_b32 s{60+k}, s{sWG+k}, s{sWU+k}')
    e(f's_mov_b32 s62, {512*2752}'); e('s_mov_b32 s63, 0x20000')
    e('s_mov_b32 exec_lo, 0x0fff0fff'); e('s_mov_b32 exec_hi, 0x0fff0fff')
    for r in range(4):
        e(f'buffer_load_dwordx4 v[{PC[r]}:{PC[r]+3}], v{vcs}, s[60:63], s{s_u0} offen', vm='prep')
        if r < 3: e(f's_add_u32 s{s_u0}, s{s_u0}, 2752')
    e('s_mov_b64 exec, -1')
    def dma_items(st):
        sl = st % 3
        out = [f's_add_u32 s{s_ox}, s{s_sx}, {st*128}', f's_add_u32 s{s_ow}, s{s_sw}, {st*64*2752}']
        grp = []
        for i in range(4):
            grp.append(('grp', [f's_add_u32 m0, s{s_m0x}, {sl*XS + i*1024}', ('vm', f'buffer_load_dwordx4 v{vxo[i]}, s[{sX}:{sX+3}], s{s_ox} offen lds', ('st', st))]))
        for mat, sd in ((0, sWG), (1, sWU)):
            for i in range(3):
                grp.append(('grp', [f's_add_u32 m0, s{s_m0w}, {sl*WSZ + mat*12320 + i*1024}', ('vm', f'buffer_load_dwordx4 v{vwo[i]}, s[{sd}:{sd+3}], s{s_ow} offen lds', ('st', st))]))
        return out, grp
    for st in range(2):
        pre, grp = dma_items(st)
        for x in pre + grp: put(e, x)
    srd(e, sSM, 90, 91, SM_SZ, SM_OFF); srd(e, sDBG, 88, 89, 256)
    stamp(e, prof, 0, 0, sSM)
    if 'nopf' not in opt:
        for x in prefetch_code(e, 'L1_main', 20480, 80, t0, 126, s_w, 'L1_pf0'): e(x)
    gen2.nonce_write(e, sDBG, s_w, s_t0, t0, 'L1_non')
    e(f'buffer_load_dword v{vNon}, v{vZ}, s[{sDBG}:{sDBG+3}], 0 offen sc0 sc1', vm='non')
    srd(e, sWR, 74, 75, 2048*514); srd(e, sWI, 76, 77, 2048*514); srd(e, sWT, 90, 91, WT_SZ, WT_OFF)
    e(f'v_bfe_u32 v{t0}, v{vA}, 1, 3'); e(f'v_lshlrev_b32 v{t1}, 7, v{vA}')
    e(f's_lshl_b32 s{s_t0}, s{s_w}, 12'); e(f's_xor_b32 s{s_t1}, s{s_w}, 1'); e(f's_lshl_b32 s{s_t1}, s{s_t1}, 12')
    for q in range(4):
        e(f'v_add_u32 v{t2}, {2*q}, v{vH}'); e(f'v_xor_b32 v{t2}, v{t2}, v{t0}'); e(f'v_lshl_add_u32 v{t2}, v{t2}, 4, v{t1}')
        e(f'v_add_u32 v{xa[q]}, s{s_t0}, v{t2}'); e(f'v_add_u32 v{xb[q]}, s{s_t1}, v{t2}')
    e(f'v_bfe_u32 v{t0}, v{l}, 4, 1'); e(f'v_mul_u32_u24 v{t0}, 12320, v{t0}')
    e(f'v_bfe_u32 v{t1}, v{l}, 2, 2'); e(f'v_lshl_add_u32 v{t1}, v{vH}, 3, v{t1}'); e(f'v_mul_u32_u24 v{t1}, 192, v{t1}')
    e(f'v_add_u32 v{t0}, v{t0}, v{t1}'); e(f'v_and_b32 v{t1}, 3, v{l}'); e(f'v_lshl_add_u32 v{t0}, v{t1}, 3, v{t0}')
    e(f's_mul_i32 s{s_t0}, s{s_ch}, 96'); e(f's_add_u32 s{s_t0}, s{s_t0}, {WS0}'); e(f'v_add_u32 v{wa}, s{s_t0}, v{t0}')
    e(f'v_lshlrev_b32 v{t0}, 4, v{l}'); e(f'v_add_u32 v{da}, {DF0}, v{t0}')
    e(f's_lshl_b32 s{s_t0}, s{s_w}, 10'); e(f'v_add_u32 v{vDW}, s{s_t0}, v{da}')
    ph = t1
    e(f'v_lshrrev_b32 v{vf}, 1, v{vA}'); e(f's_lshl_b32 s{s_t0}, s{s_g}, 4'); e(f'v_add_u32 v{vf}, s{s_t0}, v{vf}')
    e(f'v_and_b32 v{ph}, 1, v{vA}')
    e(f'v_cmp_eq_u32 vcc, 0, v{vf}'); e(f'v_cmp_eq_u32 s[{s_t2}:{s_t2+1}], 1, v{ph}'); e(f's_and_b64 vcc, vcc, s[{s_t2}:{s_t2+1}]')
    e(f'v_mov_b32 v{ang}, 0x100'); e(f'v_cndmask_b32 v{vf}, v{vf}, v{ang}, vcc'); e(f'v_cndmask_b32 v{ph}, v{ph}, 0, vcc')
    e(f'v_cvt_f32_u32 v{vf}, v{vf}'); e(f'v_mul_f32 v{vf}, 0x3b000000, v{vf}')
    e(f'v_cvt_f32_u32 v{ph}, v{ph}'); e(f'v_mul_f32 v{ph}, 0x3e800000, v{ph}')
    e(f's_lshl_b32 s{s_t0}, s{s_w}, 4'); e(f'v_lshlrev_b32 v{ang}, 3, v{vH}'); e(f'v_add_u32 v{ang}, s{s_t0}, v{ang}'); e(f'v_cvt_f32_u32 v{ang}, v{ang}')
    e(f'v_fma_f32 v{ang}, v{vf}, v{ang}, v{ph}'); e(f'v_mul_f32 v{f56}, 0x42600000, v{vf}')
    def dft_items(st):
        dv = T[0:8]; dp = T[8]
        L = []
        for jj in range(8): L += [f'v_cos_f32 v{dv[jj]}, v{ang}', f'v_add_f32 v{ang}, v{ang}, v{vf}']
        L.append(f'v_add_f32 v{ang}, v{ang}, v{f56}')
        for k in range(4): L.append(f'v_cvt_pk_bf16_f32 v{dp+k}, v{dv[2*k]}, v{dv[2*k+1]}')
        L.append(('lg', f'ds_write_b128 v{vDW}, v[{dp}:{dp+3}] offset:{(st % 3)*4096}', 'dfw'))
        return L
    for st in range(2):
        for x in dft_items(st): put(e, x)
    stamp(e, prof, 4, 0, sSM)
    e.wait_vm('prep')
    s_one, s_lo, s_hi = s_t0, s_t1, s_t2
    e(f's_mov_b32 s{s_one}, 0x3f803f80'); e(f's_mov_b32 s{s_lo}, 0x3f80'); e(f's_mov_b32 s{s_hi}, 0x3f800000')
    CA = list(range(88, 96)); SA = [96, 97, 98, 99]
    for k in range(4):
        for rr in range(2):
            c0_ = '0' if k == 0 else f'v{SA[2*rr]}'; c1_ = '0' if k == 0 else f'v{SA[2*rr+1]}'
            e(f'v_dot2_f32_bf16 v{SA[2*rr]}, v{PS[rr]+k}, s{s_one}, {c0_}')
            e(f'v_dot2_f32_bf16 v{SA[2*rr+1]}, v{PS[rr]+k}, v{PS[rr]+k}, {c1_}')
    for r in range(4):
        for d in range(4):
            for hl, ss in ((0, s_lo), (1, s_hi)):
                c = '0' if r == 0 else f'v{CA[2*d+hl]}'
                e(f'v_dot2_f32_bf16 v{CA[2*d+hl]}, v{PC[r]+d}, s{ss}, {c}')
    for ctl in ('row_shr:1', 'row_shr:2', 'row_shr:4', 'row_shr:8'):
        for k in range(4): e(f'v_add_f32_dpp v{SA[k]}, v{SA[k]}, v{SA[k]} {ctl} row_mask:0xf bank_mask:0xf bound_ctrl:0')
    for k in range(4): e(f'v_add_f32_dpp v{SA[k]}, v{SA[k]}, v{SA[k]} row_bcast:15 row_mask:0xa bank_mask:0xf')
    for k in range(4): e(f'v_add_f32_dpp v{SA[k]}, v{SA[k]}, v{SA[k]} row_bcast:31 row_mask:0xc bank_mask:0xf')
    CB = list(range(72, 80))
    for sw in ('v_permlane16_swap_b32', 'v_permlane32_swap_b32'):
        for k in range(8): e(f'v_mov_b32 v{CB[k]}, v{CA[k]}')
        for k in range(8): e(f'{sw} v{CA[k]}, v{CB[k]}')
        for k in range(8): e(f'v_add_f32 v{CA[k]}, v{CA[k]}, v{CB[k]}')
    e(f'v_lshlrev_b32 v{t0}, 5, v{l}'); e(f's_mul_i32 s{s_t3}, s{s_w}, 384'); e(f's_add_u32 s{s_t3}, s{s_t3}, {SCR}'); e(f'v_add_u32 v{t0}, s{s_t3}, v{t0}')
    e('s_mov_b64 exec, 0xfff')
    e(f'ds_write_b128 v{t0}, v[{CA[0]}:{CA[3]}]', lg='csw'); e(f'ds_write_b128 v{t0}, v[{CA[4]}:{CA[7]}] offset:16', lg='csw')
    e('s_mov_b64 exec, -1')
    e(f'v_mov_b32_dpp v{t0}, v{SA[2]} row_shl:1 row_mask:0xf bank_mask:0xf bound_ctrl:0')
    e(f'v_mov_b32_dpp v{t1}, v{SA[3]} row_shl:1 row_mask:0xf bank_mask:0xf bound_ctrl:0')
    e(f'v_cmp_eq_u32 vcc, 62, v{l}')
    sm, sq = SA[0], SA[1]
    e(f'v_cndmask_b32 v{sm}, v{sm}, v{t0}, vcc'); e(f'v_cndmask_b32 v{sq}, v{sq}, v{t1}, vcc')
    a = t0
    e(f'v_mul_f32 v{sm}, 0x3b000000, v{sm}'); e(f'v_mul_f32 v{sq}, 0x3b000000, v{sq}')
    e(f'v_fma_f32 v{sq}, -v{sm}, v{sm}, v{sq}'); e(f'v_max_f32 v{sq}, 0, v{sq}')
    e(f'v_cvt_pk_bf16_f32 v{a}, v{sq}, v{sq}'); e(f'v_and_b32 v{a}, s{s_mask}, v{a}'); e(f'v_add_f32 v{a}, 0x3727c5ac, v{a}')
    e(f'v_cvt_pk_bf16_f32 v{a}, v{a}, v{a}'); e(f'v_and_b32 v{a}, s{s_mask}, v{a}'); e(f'v_sqrt_f32 v{a}, v{a}')
    e(f'v_cvt_pk_bf16_f32 v{a}, v{a}, v{a}'); e(f'v_and_b32 v{a}, s{s_mask}, v{a}')
    e(f'v_rcp_f32 v{SA[3]}, v{a}'); e(f'v_cvt_pk_bf16_f32 v{SA[2]}, -v{sm}, -v{sm}')
    e(f's_lshl_b32 s{s_id}, s{s_t}, 4'); e(f's_add_u32 s{s_id}, s{s_id}, s{s_g}')
    e(f's_lshl_b32 s{s_t3}, s{s_id}, 7'); e(f's_lshl_b32 s{s_t0}, s{s_w}, 4'); e(f's_add_u32 s{s_t3}, s{s_t3}, s{s_t0}'); e(f's_add_u32 s{s_t3}, s{s_t3}, {ST_O}')
    e(f'v_sub_u32 v{t1}, 63, v{l}'); e(f'v_lshlrev_b32 v{t1}, 3, v{t1}')
    e('s_mov_b32 exec_lo, 0'); e('s_mov_b32 exec_hi, 0xc0000000')
    e(f'buffer_store_dwordx2 v[{SA[2]}:{SA[3]}], v{t1}, s[{sSM}:{sSM+3}], s{s_t3} offen sc0 sc1', vm='pst')
    e('s_mov_b64 exec, -1')
    stamp(e, prof, 5, 0, sSM)
    e.wait_vm(('st', 0)); e('s_waitcnt lgkmcnt(0)'); e.lg = []; e('s_barrier')
    stamp(e, prof, 1, 0, sSM)
    e.label('L1_main')
    def reads(st, q):
        buf = q & 1; sl = st % 3; tg = ('r', st, q)
        xo = sl*XS; wo = sl*WSZ + q*3072
        L = [('lg', f'ds_read_b128 v[{X[buf][0]}:{X[buf][0]+3}], v{xa[q]} offset:{xo}', tg + (0,))]
        for hh in range(2): L.append(('lg', f'ds_read_b64_tr_b16 v[{W[buf][0]+2*hh}:{W[buf][0]+2*hh+1}], v{wa} offset:{wo + hh*768}', tg + (0,)))
        L.append(('lg', f'ds_read_b128 v[{X[buf][1]}:{X[buf][1]+3}], v{xb[q]} offset:{xo}', tg + (1,)))
        for jj in (1, 2):
            for hh in range(2): L.append(('lg', f'ds_read_b64_tr_b16 v[{W[buf][jj]+2*hh}:{W[buf][jj]+2*hh+1}], v{wa} offset:{wo + jj*32 + hh*768}', tg + (2*jj,)))
        L.append(('lg', f'ds_read_b128 v[{DF[buf]}:{DF[buf]+3}], v{da} offset:{sl*4096 + q*1024}', tg + (6,)))
        return L
    u0, u1, u2, u3 = T[12], T[13], T[14], T[15]
    fill = {s: [] for s in range(8)}
    F = fill[0]
    F += [f'v_cmp_gt_u32 vcc, 96, v0', f'v_lshlrev_b32 v{u0}, 2, v0', f'v_add_u32 v{u1}, 384, v{u0}', f'v_cndmask_b32 v{u1}, v{u1}, v{u0}, vcc', f'v_add_u32 v{u1}, {SCR}, v{u1}',
          ('lg', f'ds_read_b32 v{u2}, v{u1}', 'cs0'), ('lg', f'ds_read_b32 v{u3}, v{u1} offset:384', 'cs0'),
          f'v_cmp_gt_u32 vcc, 192, v0', f'v_mov_b32 v{u1}, {OOB}', f'v_cndmask_b32 v{vsel}, v{u1}, v{u0}, vcc',
          f's_lshl_b32 s{s_u0}, s{s_g}, 4', f's_add_u32 s{s_u0}, s{s_u0}, s{s_t}', f's_mul_i32 s{s_u0}, s{s_u0}, 768', f's_add_u32 s{s_u0}, s{s_u0}, {CP_O}',
          ('wlg', 'cs0'), f'v_add_f32 v{u2}, v{u2}, v{u3}',
          ('vm', f'buffer_store_dword v{u2}, v{vsel}, s[{sSM}:{sSM+3}], s{s_u0} offen sc0 sc1', 'pst')]
    F += [f's_and_b32 s{s_vg}, s2, 7', f's_bfe_u32 s{s_t2x}, s2, 0x10003', f's_lshr_b32 s{s_dq}, s2, 4',
          f's_lshl_b32 s{s_u0}, s{s_w}, 3', f's_lshl_b32 s{s_u1}, s{s_t2x}, 2', f's_add_u32 s{s_u0}, s{s_u0}, s{s_u1}',
          f's_lshl_b32 s{s_u1}, s{s_dq}, 7', f's_add_u32 s{s_u0}, s{s_u0}, s{s_u1}',
          f's_mul_i32 s{s_u0}, s{s_u0}, 514', f's_lshl_b32 s{s_u1}, s{s_vg}, 6', f's_add_u32 s{s_u0}, s{s_u0}, s{s_u1}',
          f'v_mul_u32_u24 v{u0}, 1028, v{vH}', f'v_lshl_add_u32 v{u0}, v{vA}, 1, v{u0}', f'v_add_u32 v{u0}, s{s_u0}, v{u0}']
    F += [f's_mov_b32 s{s_dj+dj}, {dj*16448}' for dj in range(4)]
    for nn in range(2):
        for dj in range(4):
            F.append(('vm', f'buffer_load_ushort v{wtraw[nn*4+dj]}, v{u0}, s[{sWR}:{sWR+3}], s{s_dj+dj} offen offset:{nn*514}', 'wt'))
            F.append(('vm', f'buffer_load_ushort v{wtraw[8+nn*4+dj]}, v{u0}, s[{sWI}:{sWI+3}], s{s_dj+dj} offen offset:{nn*514}', 'wt'))
    F += [f's_lshl_b32 s{s_u0}, s{s_vg}, 18', f's_lshl_b32 s{s_u1}, s{s_dq}, 9', f's_add_u32 s{s_u0}, s{s_u0}, s{s_u1}',
          f's_lshl_b32 s{s_u1}, s{s_t2x}, 8', f's_add_u32 s{s_u0}, s{s_u0}, s{s_u1}', f's_lshl_b32 s{s_u1}, s{s_w}, 6', f's_add_u32 s{s_u0}, s{s_u0}, s{s_u1}',
          f'v_lshlrev_b32 v{u1}, 13, v{vA}', f'v_lshl_add_u32 v{u1}, v{vH}, 5, v{u1}', f'v_add_u32 v{vwta}, s{s_u0}, v{u1}',
          f'v_lshlrev_b32 v{vwtx}, 2, v{l}',
          ('grp', [f's_cmp_eq_u32 s{s_vg}, 7', f's_cselect_b32 s{s_u0}, 1, 0', f's_cmp_eq_u32 s{s_w}, 0', f's_cselect_b32 s{s_sp}, s{s_u0}, 0'])]
    F = fill[1]
    F += [('grp', [f's_cmp_eq_u32 s{s_sp}, 1', 's_cbranch_scc1 L1_spa', 'L1_spa_ret:'])]
    F = fill[2]
    F += [('wvm', 'non'), f'v_readfirstlane_b32 s{s_n}, v{vNon}',
          ('grp', [f's_cmp_eq_u32 s{s_n}, 0', 's_cbranch_scc1 L1_ng', 'L1_ng_ret:']),
          f's_lshl_b32 s{s_u0}, s{s_id}, 7', f's_add_u32 s{s_u0}, s{s_u0}, {FL1_O}', ('grp', [f's_cmp_eq_u32 s{s_w}, 0', f's_cselect_b32 s{s_u0}, s{s_u0}, {OOB}']),
          f'v_mov_b32 v{u0}, s{s_n}',
          ('grp', ['s_mov_b64 exec, 1', ('vm', f'buffer_store_dword v{u0}, v{vZ}, s[{sSM}:{sSM+3}], s{s_u0} offen sc0 sc1', 'flag'), 's_mov_b64 exec, -1'])]
    df, vv, a0, a1, par = u0, u1, u2, u3, tmp[5]
    cw = list(range(cpl[8], cpl[8] + 8))
    I = [f's_lshl_b32 s{s_u0}, s2, 1', f's_add_u32 s{s_fi}, s{s_u0}, s{s_ch}', f's_lshr_b32 s{s_u0}, s{s_fi}, 5', f's_and_b32 s{s_u1}, s{s_fi}, 31',
         f'v_bfe_u32 v{df}, v{vA}, 2, 1', f'v_lshlrev_b32 v{df}, 4, v{df}', f'v_lshrrev_b32 v{vv}, 3, v{vA}', f'v_lshl_add_u32 v{df}, v{vv}, 2, v{df}',
         f'v_and_b32 v{vv}, 3, v{vA}', f'v_add_u32 v{df}, v{df}, v{vv}', f's_lshl_b32 s{s_u0}, s{s_u0}, 5', f'v_add_u32 v{df}, s{s_u0}, v{df}',
         f'v_and_b32 v{par}, 1, v{df}', f'v_cvt_f32_u32 v{df}, v{df}', f'v_mul_f32 v{df}, 0x3b000000, v{df}',
         f's_lshl_b32 s{s_u2}, s{s_u1}, 3', f'v_lshl_add_u32 v{vv}, v{vH}, 1, s{s_u2}', f'v_cvt_f32_u32 v{a0}, v{vv}', f'v_mul_f32 v{a0}, v{a0}, v{df}']
    for k, dv in enumerate((0, 1, 4, 5)):
        if dv == 0: I.append(f'v_mov_b32 v{a1}, v{a0}')
        elif dv == 1: I.append(f'v_add_f32 v{a1}, v{a0}, v{df}')
        elif dv == 4: I.append(f'v_fma_f32 v{a1}, 4.0, v{df}, v{a0}')
        else: I.append(f'v_add_f32 v{a1}, v{a1}, v{df}')
        I += [f'v_cos_f32 v{cw[2*k]}, v{a1}', f'v_sin_f32 v{cw[2*k+1]}, v{a1}']
    I += [f'v_mul_f32 v{cw[k]}, 0x36000000, v{cw[k]}' for k in range(8)]
    I += [f'v_cmp_eq_u32 vcc, 0, v{vv}', f'v_mov_b32 v{a0}, 0x35800000', f'v_lshlrev_b32 v{par}, 31, v{par}', f'v_xor_b32 v{a1}, 0xb5800000, v{par}',
          f'v_cndmask_b32 v{cw[0]}, v{cw[0]}, v{a0}, vcc', f'v_cndmask_b32 v{cw[1]}, v{cw[1]}, v{a1}, vcc']
    I += [f'v_cvt_pk_bf16_f32 v{idf+k}, v{cw[2*k]}, v{cw[2*k+1]}' for k in range(4)]
    I += [f's_lshl_b32 s{s_u0}, s{s_fi}, 10', f'v_lshlrev_b32 v{u0}, 4, v{l}',
          ('vm', f'buffer_store_dwordx4 v[{idf}:{idf+3}], v{u0}, s[{sSM}:{sSM+3}], s{s_u0} offen', 'id')]
    fill[1] += I
    F = fill[3]
    F += [('wvm', 'wt')]
    for nn in range(2):
        for dj in range(4): F.append(f'v_lshl_or_b32 v{wtraw[nn*4+dj]}, v{wtraw[8+nn*4+dj]}, 16, v{wtraw[nn*4+dj]}')
        F.append(('vm', f'buffer_store_dwordx4 v[{wtraw[nn*4]}:{wtraw[nn*4]+3}], v{vwta}, s[{sWT}:{sWT+3}], 0 offen offset:{nn*16}', 'wts'))
    F += [('grp', [f's_cmp_eq_u32 s{s_sp}, 1', 's_cbranch_scc1 L1_spb', 'L1_spb_ret:'])]
    F = fill[5]
    F += [f'v_and_b32 v{u0}, 15, v{l}', f's_lshl_b32 s{s_u0}, s{s_t}, 4', f'v_add_u32 v{u1}, s{s_u0}, v{u0}',
          f'v_lshlrev_b32 v{u0}, 4, v{u0}', f'v_add_u32 v{u0}, s{s_g}, v{u0}',
          f'v_bfe_u32 v{u2}, v{l}, 4, 1', f'v_cmp_eq_u32 vcc, 0, v{u2}', f'v_cndmask_b32 v{u0}, v{u0}, v{u1}, vcc',
          f'v_lshlrev_b32 v{vFa}, 7, v{u0}', f'v_add_u32 v{vFa}, {FL1_O}, v{vFa}',
          ('vm', f'buffer_load_dword v{vFl}, v{vFa}, s[{sSM}:{sSM+3}], 0 offen sc0 sc1', 'fl')]
    fill[4] += [('grp', [f's_add_u32 s{sH}, s90, {H_OFF}', f's_addc_u32 s{sH+1}, s91, 0']), f's_and_b32 s{sH+1}, s{sH+1}, 0xffff', f's_mov_b32 s{sH+2}, {H_SZ}', f's_mov_b32 s{sH+3}, 0x20000',
          ('grp', [f's_add_u32 s{sX1}, s90, {X1_OFF}', f's_addc_u32 s{sX1+1}, s91, 0']), f's_and_b32 s{sX1+1}, s{sX1+1}, 0xffff', f's_mov_b32 s{sX1+2}, {X1_SZ}', f's_mov_b32 s{sX1+3}, 0x20000']
    F = fill[6]
    F += [('wvm', 'fl'), f'v_cmp_ne_u32 vcc, s{s_n}, v{vFl}', ('grp', ['s_cmp_lg_u64 vcc, 0', 's_cbranch_scc1 L1_spin', 'L1_spin_ret:'])]
    for dst, flip in ((NM0, 0), (NM1, 1)):
        F += [f's_xor_b32 s{s_u0}, s{s_w}, {flip}', f's_lshl_b32 s{s_u0}, s{s_u0}, 2', f's_lshl_b32 s{s_u1}, s{s_t}, 4', f's_add_u32 s{s_u0}, s{s_u0}, s{s_u1}',
              f's_lshl_b32 s{s_u0}, s{s_u0}, 7', f's_add_u32 s{s_u0}, s{s_u0}, {ST_O}']
        if flip == 0: F += [f'v_lshrrev_b32 v{u0}, 3, v{vA}', f'v_lshlrev_b32 v{u0}, 7, v{u0}', f'v_and_b32 v{u1}, 7, v{vA}', f'v_lshl_add_u32 v{u0}, v{u1}, 3, v{u0}']
        F.append(('vm', f'buffer_load_dwordx2 v[{dst}:{dst+1}], v{u0}, s[{sSM}:{sSM+3}], s{s_u0} offen sc0 sc1', 'cp'))
    F += [f's_mul_i32 s{s_u0}, s{s_g}, {16*768}', f's_add_u32 s{s_u0}, s{s_u0}, {CP_O}']
    for k in range(16):
        if k and k % 5 == 0: F.append(f's_add_u32 s{s_u0}, s{s_u0}, {5*768}')
        F.append(('vm', f'buffer_load_dword v{cpl[k]}, v{vsel}, s[{sSM}:{sSM+3}], s{s_u0} offen offset:{(k % 5)*768} sc0 sc1', 'cp'))
    F = fill[4]
    if 'nopf' not in opt:
        F += [f's_mov_b32 s{sWD}, s78', f's_and_b32 s{sWD+1}, s79, 0xffff', f's_mov_b32 s{sWD+2}, {1376*1024}', f's_mov_b32 s{sWD+3}, 0x20000',
              f's_mul_i32 s{s_u0}, s2, 5504', ('grp', [f's_cmp_eq_u32 s{s_w}, 0', f's_cselect_b32 s{s_u0}, s{s_u0}, {OOB}']),
              f'v_lshlrev_b32 v{u0}, 7, v{l}',
              ('grp', ['s_mov_b32 exec_hi, 0x7ff', ('vm', f'buffer_load_dword v126, v{u0}, s[{sWD}:{sWD+3}], s{s_u0} offen', 'pf'), 's_mov_b32 exec_hi, -1'])]
        if 'k2code' in opt:
            F += [('grp', prefetch_code(e, 'gf_k2_kernel', 16384, 80, u0, 126, s_w, 'L1_pf1'))]
    F = fill[7]
    c_, b_ = u2, u3
    F += [('wvm', 'cp')]
    F += [f'v_add_f32 v{cpl[k]}, v{cpl[k]}, v{cpl[k+8]}' for k in range(8)]
    F += [f'v_add_f32 v{cpl[k]}, v{cpl[k]}, v{cpl[k+4]}' for k in range(4)]
    F += [f'v_add_f32 v{cpl[0]}, v{cpl[0]}, v{cpl[2]}', f'v_add_f32 v{cpl[1]}, v{cpl[1]}, v{cpl[3]}', f'v_add_f32 v{cpl[0]}, v{cpl[0]}, v{cpl[1]}',
          f'v_cvt_pk_bf16_f32 v{b_}, v{cpl[0]}, v{cpl[0]}', f'v_and_b32 v{b_}, s{s_mask}, v{b_}', f'v_sub_f32 v{c_}, v{cpl[0]}, v{b_}', f'v_cvt_pk_bf16_f32 v{b_}, v{b_}, v{c_}',
          f'v_lshlrev_b32 v{u0}, 2, v0', f'v_add_u32 v{u0}, {SCR2}, v{u0}', ('lg', f'ds_write_b32 v{u0}, v{b_}', 'cst')]
    CF = [28, 32, 36]; CD = 40; BM = [44, 48]
    F += [f'v_bfe_u32 v{u0}, v{l}, 4, 1', f'v_mul_u32_u24 v{u0}, 384, v{u0}', f'v_and_b32 v{u1}, 15, v{l}', f'v_lshl_add_u32 v{u0}, v{u1}, 2, v{u0}',
          f's_mul_i32 s{s_u0}, s{s_ch}, 192', f's_add_u32 s{s_u0}, s{s_u0}, {SCR2}', f'v_add_u32 v{vsel}, s{s_u0}, v{u0}']
    F += [f'v_mov_b32 v{r+k}, 0' for r in CF + [CD] + BM for k in range(1, 4)]
    F += [f'v_mov_b32 v{BM[0]}, v{NM0}', f'v_mov_b32 v{BM[1]}, v{NM1}',
          ('grp', [f's_cmp_eq_u32 s{s_g}, 0', f's_cselect_b32 s{s_u0}, 0x4400, 0']), f'v_mov_b32 v{u0}, s{s_u0}', f'v_cmp_eq_u32 vcc, 0, v{l}', f'v_cndmask_b32 v{CD}, 0, v{u0}, vcc']
    for st in range(6): fill[st] = dft_items(st + 2) + fill[st] if st not in (0,) else fill[st][:17] + dft_items(st + 2) + fill[st][17:]
    for x in reads(0, 0): put(e, x)
    rgap = [0, 0, 0, 1, 1, 2, 2, 3, 3]
    need = {0: 0, 1: 1, 2: 2, 4: 4, 6: 6}
    for st in range(8):
        pre, dgrp = dma_items(st + 2) if st + 2 < 8 else ([], [])
        if 'nodma' in opt: pre, dgrp = [], []
        if st == 7: fl = [[] for _ in range(5)] + spread(fill[st], 16) + [[] for _ in range(7)]
        elif st == 6: fl = spread(fill[st], 14) + [[] for _ in range(14)]
        else: fl = spread(fill[st], 28, [1.0]*21 + [0.6]*7)
        for q in range(4):
            buf = q & 1
            last = (st == 7 and q == 3)
            nst, nq = (st, q + 1) if q < 3 else (st + 1, 0)
            rd = reads(nst, nq) if not last else []
            gaps = [[] for _ in range(7)]
            if q == 3 and not last:
                gaps[0] += [('wvm', ('st', nst))] + ([('wvm', 'pst')] if st == 1 else []) + ['s_barrier']
            for k, x in enumerate(rd): gaps[rgap[k] + (1 if q == 3 else 0)].append(x)
            if q == 0: gaps[2] += pre
            if q < 3:
                lo, hi_ = [(0, 4), (4, 7), (7, 10)][q]
                for k, grp in enumerate(dgrp[lo:hi_]): gaps[3 + k if hi_ - lo == 4 else 4 + k].append(grp)
            for i in range(7): gaps[i] += fl[7*q + i]
            if st == 7 and q == 2:
                pass
            for i in range(7):
                if q == 3 and i == 0:
                    e('s_waitcnt lgkmcnt(0)'); e.lg = []
                    if st == 7:
                        e('s_barrier')
                        for jj in range(3): e(f'ds_read_b32 v{tmp[jj]}, v{vsel} offset:{64*jj}', lg='csr')
                elif i in need and q < 3 or (i in need and q == 3 and False):
                    e.wait_lg(('r', st, q, i))
                first = (st == 0 and q == 0)
                if i < 6:
                    jj, idx = i >> 1, i & 1; ac = accM[jj][idx]
                    e(f'v_mfma_f32_32x32x16_bf16 v[{ac}:{ac+15}], v[{W[buf][jj]}:{W[buf][jj]+3}], v[{X[buf][idx]}:{X[buf][idx]+3}], ' + ('0' if first else f'v[{ac}:{ac+15}]'))
                else:
                    e(f'v_mfma_f32_32x32x16_bf16 v[{accD}:{accD+15}], v[{DF[buf]}:{DF[buf]+3}], v[{X[buf][0]}:{X[buf][0]+3}], ' + ('0' if first else f'v[{accD}:{accD+15}]'))
                for x in gaps[i]: put(e, x)
    stamp(e, prof, 2, 0, sSM)
    e(f'v_mfma_f32_32x32x16_bf16 v[{accD}:{accD+15}], v[{CD}:{CD+3}], v[{BM[0]}:{BM[0]+3}], v[{accD}:{accD+15}]')
    e(f'v_cmp_gt_u32 vcc, 32, v{l}')
    e.wait_lg('csr')
    for jj in range(3): e(f'v_cndmask_b32 v{CF[jj]}, 0, v{tmp[jj]}, vcc')
    cm = []
    for jj in range(3):
        for idx in range(2):
            ac = accM[jj][idx]
            cm.append(f'v_mfma_f32_32x32x16_bf16 v[{ac}:{ac+15}], v[{CF[jj]}:{CF[jj]+3}], v[{BM[idx]}:{BM[idx]+3}], v[{ac}:{ac+15}]')
    e(f'v_lshlrev_b32 v{vxo[0]}, 4, v{l}')
    e(f'v_lshlrev_b32 v{vxo[1]}, 2, v{vA}'); e(f'v_lshl_add_u32 v{vxo[1]}, v{vH}, 14, v{vxo[1]}')
    e(f's_lshl_b32 s{s_t0}, s{s_g}, 17'); e(f's_lshl_b32 s{s_t1}, s{s_b}, 7'); e(f's_add_u32 s{s_t0}, s{s_t0}, s{s_t1}')
    x1 = []
    for q in range(4):
        for ip in range(2):
            j = 4*q + 2*ip
            x1 += [f'v_mul_f32 v{accD+j}, v{R0}, v{accD+j}', f'v_mul_f32 v{accD+j+1}, v{R0}, v{accD+j+1}', f'v_cvt_pk_bf16_f32 v{accD+j}, v{accD+j}, v{accD+j+1}',
                   f's_add_u32 s{s_t1}, s{s_t0}, {(4*q+ip)*8192}', f'buffer_store_dword v{accD+j}, v{vxo[1]}, s[{sX1}:{sX1+3}], s{s_t1} offen']
    ch = spread(x1, 6)
    for k in range(6):
        e(cm[k])
        for x in ch[k]: put(e, x)
    e(f's_lshl_b32 s{s_t0}, s{s_P}, 1'); e(f's_mul_i32 s{s_t1}, s{s_ch}, 3'); e(f's_add_u32 s{s_t0}, s{s_t0}, s{s_t1}')
    e(f's_mul_i32 s{s_t1}, s{s_b}, 86'); e(f's_add_u32 s{s_t1}, s{s_t1}, s{s_t0}'); e(f's_lshl_b32 s{s_t1}, s{s_t1}, 10')
    e(f's_xor_b32 s{s_t2}, s{s_b}, 1'); e(f's_mul_i32 s{s_t2}, s{s_t2}, 86'); e(f's_add_u32 s{s_t2}, s{s_t2}, s{s_t0}'); e(f's_lshl_b32 s{s_t2}, s{s_t2}, 10')
    for jj in range(3):
        for idx in range(2):
            ac = accM[jj][idx]
            o = [W[1][0], W[1][1], W[1][2], X[1][0], X[1][1], DF[0]][2*jj + idx]
            for j in range(8): e(f'v_max_f32 v{ac+j}, 0, v{ac+j}')
            for j in range(8): e(f'v_mul_f32 v{ac+j}, v{ac+j}, v{ac+8+j}')
            for k in range(4): e(f'v_cvt_pk_bf16_f32 v{o+k}, v{ac+2*k}, v{ac+2*k+1}')
            e(f'buffer_store_dwordx4 v[{o}:{o+3}], v{vxo[0]}, s[{sH}:{sH+3}], s{s_t1 if idx == 0 else s_t2} offen offset:{jj*1024}')
    if prof:
        e('s_waitcnt vmcnt(0)'); stamp(e, prof, 3, 0, sSM)
    e.label('L1_done'); e('s_endpgm')
    e.label('L1_ng')
    e(f's_mov_b32 s{SPIN}, 0')
    e.label('L1_ng_a')
    e(f'buffer_load_dword v{vNon}, v{vZ}, s[{sDBG}:{sDBG+3}], 0 offen sc0 sc1'); e('s_waitcnt vmcnt(0)')
    e(f'v_readfirstlane_b32 s{s_n}, v{vNon}'); e(f's_cmp_lg_u32 s{s_n}, 0'); e('s_cbranch_scc1 L1_ng_ret')
    e(f's_add_u32 s{SPIN}, s{SPIN}, 1'); e(f's_cmp_gt_u32 s{SPIN}, {SPIN_MAX}'); e('s_cbranch_scc1 L1_ng_ret'); e('s_branch L1_ng_a')
    e.label('L1_spin')
    e(f's_mov_b32 s{SPIN}, 0')
    e.label('L1_spin_a')
    e(f'buffer_load_dword v{vFl}, v{vFa}, s[{sSM}:{sSM+3}], 0 offen sc0 sc1'); e('s_waitcnt vmcnt(0)')
    e(f'v_cmp_ne_u32 vcc, s{s_n}, v{vFl}'); e('s_cmp_eq_u64 vcc, 0'); e('s_cbranch_scc1 L1_spin_ret')
    e(f's_add_u32 s{SPIN}, s{SPIN}, 1'); e(f's_cmp_gt_u32 s{SPIN}, {SPIN_MAX}'); e('s_cbranch_scc1 L1_spin_ret'); e('s_branch L1_spin_a')
    e.label('L1_spa')
    p0, p1 = tmp[0], tmp[1]
    e(f'v_lshrrev_b32 v{p0}, 4, v{l}'); e(f'v_lshlrev_b32 v{p0}, 3, v{p0}'); e(f'v_bfe_u32 v{p1}, v{l}, 2, 2'); e(f'v_add_u32 v{p0}, v{p0}, v{p1}')
    e(f'v_and_b32 v{p1}, 3, v{l}'); e(f'v_lshl_add_u32 v{p0}, v{p1}, 5, v{p0}')
    e(f's_lshl_b32 s{s_t0}, s{s_t2x}, 2'); e(f's_lshl_b32 s{s_t1}, s{s_dq}, 7'); e(f's_add_u32 s{s_t0}, s{s_t0}, s{s_t1}')
    e(f'v_add_u32 v{p0}, s{s_t0}, v{p0}'); e(f'v_sub_u32 v{p1}, 0x800, v{p0}'); e(f'v_and_b32 v{p1}, 0x7ff, v{p1}')
    e(f'v_mul_u32_u24 v{p0}, 514, v{p0}'); e(f'v_mul_u32_u24 v{p1}, 514, v{p1}')
    for k, (va, off) in enumerate(((p0, 0), (p1, 0), (p0, 512), (p1, 512))):
        e(f'buffer_load_ushort v{SP[2*k]}, v{va}, s[{sWR}:{sWR+3}], 0 offen offset:{off}')
        e(f'buffer_load_ushort v{SP[2*k+1]}, v{va}, s[{sWI}:{sWI+3}], 0 offen offset:{off}')
    e(f's_lshl_b32 s{s_t0}, s{s_dq}, 9'); e(f's_lshl_b32 s{s_t1}, s{s_t2x}, 8'); e(f's_add_u32 s{s_t0}, s{s_t0}, s{s_t1}'); e(f's_add_u32 s{s_t0}, s{s_t0}, {256*8192}')
    e(f'v_add_u32 v{vwtx}, s{s_t0}, v{vwtx}'); e('s_branch L1_spa_ret')
    e.label('L1_spb')
    e('s_waitcnt vmcnt(12)')
    for k in range(8): e(f'v_lshlrev_b32 v{SP[k]}, 16, v{SP[k]}')
    ar, ai, cr, ci, er, ei, fr, fi = SP
    e(f'v_add_f32 v{ar}, v{ar}, v{cr}'); e(f'v_sub_f32 v{ai}, v{ai}, v{ci}'); e(f'v_add_f32 v{er}, v{er}, v{fr}'); e(f'v_sub_f32 v{ei}, v{ei}, v{fi}')
    e(f'v_add_f32 v{cr}, v{ar}, v{er}'); e(f'v_add_f32 v{ci}, v{ai}, v{ei}'); e(f'v_sub_f32 v{fr}, v{ar}, v{er}'); e(f'v_sub_f32 v{fi}, v{ai}, v{ei}')
    for r in (cr, ci, fr, fi): e(f'v_mul_f32 v{r}, 0x3e800000, v{r}')
    e(f'v_cvt_pk_bf16_f32 v{wsp[0]}, v{cr}, v{ci}'); e(f'v_cvt_pk_bf16_f32 v{wsp[1]}, v{fr}, v{fi}')
    e(f'buffer_store_dword v{wsp[1]}, v{vwtx}, s[{sWT}:{sWT+3}], 0 offen')
    e(f's_movk_i32 s{s_t0}, 8192')
    e(f'buffer_store_dword v{wsp[0]}, v{vwtx}, s[{sWT}:{sWT+3}], s{s_t0} offen')
    e('s_branch L1_spb_ret')
    return e.L, LDS

def kernel_text(name, lines):
    hdr = [f'.globl {name}', '.p2align 8', f'.type {name},@function', f'{name}:']
    return hdr + fix_hazards(lines)

def build(prof=False, which=(1, 2), opt=()):
    ks = {1: ('gf_k1_kernel', k1(prof, opt), 256), 2: ('gf_k2_kernel', gen2.k2(prof, opt=opt), 256)}
    out = []
    for i in which:
        n, (L, lds), grid = ks[i]
        out.append(f'; @launch kernel={n} grid=({grid},1,1) block=(256,1,1) lds={lds}')
    out += ['.amdgcn_target "amdgcn-amd-amdhsa--gfx950"', '.text']
    for i in which:
        n, (L, lds), grid = ks[i]
        out += kernel_text(n, L)
    out += ['.section .rodata,"a"']
    for i in which: out += kd(ks[i][0])
    return '\n'.join(out) + '\n'

if __name__ == '__main__':
    import sys
    s = build('--prof' in sys.argv)
    open(sys.argv[1], 'w').write(s)
    print(len(s), 'bytes')
```
